```python
import torch

def _softmax(x, axis=-1):
    return torch.softmax(x, dim=axis)
def _gelu(x):
    return torch.nn.functional.gelu(x, approximate="tanh")
def _silu(x):
    return torch.nn.functional.silu(x)
def _sigmoid(x):
    return torch.sigmoid(x)
def _layernorm(x, axis=-1, eps=1e-5):
    m = x.mean(dim=axis, keepdim=True)
    v = x.var(dim=axis, keepdim=True, unbiased=False)
    return (x - m) / torch.sqrt(v + eps)
def _scatter_add(tgt, idx, src, axis=0):
    return tgt.clone().index_add_(axis, idx, src)
def _segment_sum(src, seg, n):
    out = torch.zeros((n,) + src.shape[1:], dtype=src.dtype)
    return out.index_add_(0, seg, src)
def _pad(x, pw):
    flat = tuple(v for pair in reversed(pw) for v in pair)
    return torch.nn.functional.pad(x, flat)

kernel_name = 'sequential_preLN__ssm_conv_s4d__dense_activation_gelu__prompt'

def setup_inputs():

    _w = (lambda a: (lambda t: t.to(torch.bfloat16) if t.is_floating_point() else t)(torch.as_tensor(a)))
    def _A_setup():
        Bsz, L, D, N = 1, 2048, 512, 128
        return {
            "u": _w((lambda *s: torch.randn(*s, dtype=torch.bfloat16) * 0.05)(Bsz, L, D)),
            "log_A_real": _w((lambda *s: torch.randn(*s, dtype=torch.bfloat16) * 6.4)(D, N) * 0.5),
            "A_imag": _w((lambda *s: torch.randn(*s, dtype=torch.bfloat16) * 0.05)(D, N) * 3.14),
            "C_real": _w((lambda *s: torch.randn(*s, dtype=torch.bfloat16) * 0.05)(D, N) / N ** 0.5),
            "C_imag": _w((lambda *s: torch.randn(*s, dtype=torch.bfloat16) * 0.05)(D, N) / N ** 0.5),
            "log_dt": _w((lambda *s: torch.randn(*s, dtype=torch.bfloat16) * 0.05)(D) * 0.5 - 4.0),
            "D_skip": _w((lambda *s: torch.randn(*s, dtype=torch.bfloat16) * 0.05)(D)),
        }
    _A_in = _A_setup()

    def _B_setup():
        B, S, D, F = 1, 2048, 512, 1792
        return {
            "x": _w((lambda *s: torch.randn(*s, dtype=torch.bfloat16) * 0.05)(B, S, D)),
            "w1": _w((lambda *s: torch.randn(*s, dtype=torch.bfloat16) * 0.8)(D, F) * (D ** -0.5)),
            "b1": _w((lambda *s: torch.randn(*s, dtype=torch.bfloat16) * 12.8)(F) * 0.01),
            "w2": _w((lambda *s: torch.randn(*s, dtype=torch.bfloat16) * 0.4)(F, D) * (F ** -0.5)),
            "b2": _w((lambda *s: torch.randn(*s, dtype=torch.bfloat16) * 6.4)(D) * 0.01),
        }
    _B_in = _B_setup()

    return {
        "A_u": _A_in["u"],
        "A_log_A_real": _A_in["log_A_real"],
        "A_A_imag": _A_in["A_imag"],
        "A_C_real": _A_in["C_real"],
        "A_C_imag": _A_in["C_imag"],
        "A_log_dt": _A_in["log_dt"],
        "A_D_skip": _A_in["D_skip"],
        "B_x": _B_in["x"],
        "B_w1": _B_in["w1"],
        "B_b1": _B_in["b1"],
        "B_w2": _B_in["w2"],
        "B_b2": _B_in["b2"],
    }

def reference(A_u, A_log_A_real, A_A_imag, A_C_real, A_C_imag, A_log_dt, A_D_skip, B_x, B_w1, B_b1, B_w2, B_b2):
    def _A_ref(u, log_A_real, A_imag, C_real, C_imag, log_dt, D_skip):
        L = u.shape[1]
        dt = torch.exp(log_dt)
        A = -torch.exp(log_A_real) + 1j * A_imag
        C = (C_real + 1j * C_imag) * dt[:, None]
        pos = (lambda x, dt: x.to(dt))(torch.arange(L), log_dt.dtype)
        P = torch.exp((A * dt[:, None])[:, :, None] * pos[None, None, :])
        K = 2.0 * torch.einsum("dn,dnl->dl", C, P).real
        L2 = 2 * L
        u_t = (lambda x, *d: x.permute(*d))(u, 0, 2, 1)
        Kf = (lambda x, *a, **k: torch.fft.rfft(x.float(), *a, **k))(K, L2)
        Uf = (lambda x, *a, **k: torch.fft.rfft(x.float(), *a, **k))(u_t, L2)
        y = (lambda x, *a, **k: torch.fft.irfft(x, *a, **k).to(torch.bfloat16))(Uf * Kf[None, :, :], L2)[:, :, :L]
        y = (lambda x, *d: x.permute(*d))(y, 0, 2, 1)
        return y + u * D_skip[None, None, :]

    def _B_ref(x, w1, b1, w2, b2):
        h = torch.einsum("bsd,df->bsf", x, w1) + b1
        h = _gelu(h)
        return torch.einsum("bsf,fd->bsd", h, w2) + b2

    x = A_u
    h = x + _A_ref(_layernorm(x, axis=-1), A_log_A_real, A_A_imag, A_C_real, A_C_imag, A_log_dt, A_D_skip)
    h2 = h + _B_ref(_layernorm(h, axis=-1), B_w1, B_b1, B_w2, B_b2)
    return h2
```

```python
from kb import *
WS_XG=0
WS_LG=2<<20
WS_KR=4<<20
KLD=4160
WS_HB=8<<20
WS_H1=10<<20
WS_CS=18<<20
L=2048; D=512; F=1792; N=128
LOG2E=1.4426950408889634
def f32hex(x):
    import struct
    return '0x%08x'%struct.unpack('<I',struct.pack('<f',x))[0]
import struct
def f32split(x):
    hi=struct.unpack('<f',struct.pack('<f',x))[0]
    lo=x-hi
    return hi,lo

def srd(k,sreg,base_s,off,size):
    if off:
        k(f's_add_u32 s{sreg}, s{base_s}, {hex(off)}')
        k(f's_addc_u32 s{sreg+1}, s{base_s+1}, 0')
    else:
        k(f's_mov_b32 s{sreg}, s{base_s}')
        k(f's_mov_b32 s{sreg+1}, s{base_s+1}')
    k(f's_mov_b32 s{sreg+2}, {hex(size)}')
    k(f's_mov_b32 s{sreg+3}, 0x00020000')

def reduce64_pair(k, a, b, sa, sb):
    for r in (8,4,2,1):
        k(f'v_add_f32_dpp v{a}, v{a}, v{a} row_ror:{r} row_mask:0xf bank_mask:0xf')
        k(f'v_add_f32_dpp v{b}, v{b}, v{b} row_ror:{r} row_mask:0xf bank_mask:0xf')
    k(f'v_add_f32_dpp v{a}, v{a}, v{a} row_bcast:15 row_mask:0xa bank_mask:0xf')
    k(f'v_add_f32_dpp v{b}, v{b}, v{b} row_bcast:15 row_mask:0xa bank_mask:0xf')
    k(f'v_add_f32_dpp v{a}, v{a}, v{a} row_bcast:31 row_mask:0xc bank_mask:0xf')
    k(f'v_add_f32_dpp v{b}, v{b}, v{b} row_bcast:31 row_mask:0xc bank_mask:0xf')
    k(f'v_readlane_b32 s{sa}, v{a}, 63')
    k(f'v_readlane_b32 s{sb}, v{b}, 63')

def role_ln(k):
    k.c('======== LN1 + transposes: rows 8*wg .. 8*wg+7 ========')
    k('s_load_dwordx2 s[4:5], s[0:1], 0')
    k('s_load_dwordx2 s[6:7], s[0:1], 112')
    lane=k.v.alloc(); wv=k.v.alloc(); voff=k.v.alloc()
    k(f'v_and_b32 v{lane}, 63, v0')
    k(f'v_lshrrev_b32 v{wv}, 6, v0')
    k(f'v_lshlrev_b32 v{voff}, 4, v{lane}')
    k(f'v_readfirstlane_b32 s20, v{wv}')
    k('s_lshl_b32 s21, s2, 13')
    k('s_lshl_b32 s22, s20, 11')
    k('s_add_u32 s22, s22, s21')
    k('s_waitcnt lgkmcnt(0)')
    srd(k,8,4,0,L*D*2)
    x=[k.v.alloc(4,4),k.v.alloc(4,4)]
    k(f'buffer_load_dwordx4 {V(x[0],4)}, v{voff}, s[8:11], s22 offen')
    k(f'buffer_load_dwordx4 {V(x[1],4)}, v{voff}, s[8:11], s22 offen offset:1024')
    srd(k,12,6,WS_XG,2<<20)
    srd(k,16,6,WS_LG,2<<20)
    RS=1088; LSB=8*RS
    wa=k.v.alloc()
    k(f's_mul_i32 s23, s20, {2*RS}')
    k(f'v_add_u32 v{wa}, s23, v{voff}')
    ra=k.v.alloc(); t0=k.v.alloc(); t1=k.v.alloc()
    k(f'v_bfe_u32 v{t0}, v{lane}, 2, 2')
    k(f'v_mul_u32_u24 v{ra}, {RS}, v{t0}')
    k(f'v_lshrrev_b32 v{t0}, 4, v{lane}')
    k(f'v_lshlrev_b32 v{t0}, 5, v{t0}')
    k(f'v_and_b32 v{t1}, 3, v{lane}')
    k(f'v_lshlrev_b32 v{t1}, 3, v{t1}')
    k(f'v_add3_u32 v{ra}, v{ra}, v{t0}, v{t1}')
    k(f's_lshl_b32 s24, s20, 8')
    k(f'v_add_u32 v{ra}, s24, v{ra}')
    f=[k.v.alloc(8),k.v.alloc(8)]
    sm=[k.v.alloc(),k.v.alloc()]
    k('s_mov_b32 s30, 0xffff0000')
    k('s_waitcnt vmcnt(0)')
    for r in range(2):
        for i in range(4):
            k(f'v_lshlrev_b32 v{f[r]+2*i}, 16, v{x[r]+i}')
            k(f'v_and_b32 v{f[r]+2*i+1}, s30, v{x[r]+i}')
    for r in range(2):
        k(f'ds_write_b128 v{wa}, {V(x[r],4)} offset:{r*RS}')
    for r in range(2):
        k(f'v_add_f32 v{sm[r]}, v{f[r]}, v{f[r]+1}')
    for i in range(2,8):
        for r in range(2):
            k(f'v_add_f32 v{sm[r]}, v{sm[r]}, v{f[r]+i}')
    reduce64_pair(k,sm[0],sm[1],26,27)
    mean=[k.v.alloc(),k.v.alloc()]
    k(f's_mov_b32 s31, {f32hex(1.0/512)}')
    for r in range(2):
        k(f'v_mov_b32 v{mean[r]}, s{26+r}')
    for r in range(2):
        k(f'v_mul_f32 v{mean[r]}, s31, v{mean[r]}')
    dv=[k.v.alloc(),k.v.alloc()]
    for i in range(8):
        for r in range(2):
            k(f'v_sub_f32 v{dv[r]}, v{f[r]+i}, v{mean[r]}')
            if i==0: k(f'v_mul_f32 v{sm[r]}, v{dv[r]}, v{dv[r]}')
            else: k(f'v_fmac_f32 v{sm[r]}, v{dv[r]}, v{dv[r]}')
    reduce64_pair(k,sm[0],sm[1],26,27)
    rs=[k.v.alloc(),k.v.alloc()]
    def rb(dst,src):
        k(f'v_cvt_pk_bf16_f32 v{dst}, v{src}, v{src}')
        k(f'v_and_b32 v{dst}, s30, v{dst}')
    k(f's_mov_b32 s29, {f32hex(1e-5)}')
    for r in range(2):
        k(f'v_mov_b32 v{rs[r]}, s{26+r}')
    for r in range(2):
        k(f'v_mul_f32 v{rs[r]}, s31, v{rs[r]}')
    for r in range(2): rb(rs[r],rs[r])
    for r in range(2): k(f'v_add_f32 v{rs[r]}, s29, v{rs[r]}')
    for r in range(2): rb(rs[r],rs[r])
    for r in range(2): k(f'v_sqrt_f32 v{rs[r]}, v{rs[r]}')
    for r in range(2): rb(rs[r],rs[r])
    for r in range(2): k(f'v_rcp_f32 v{rs[r]}, v{rs[r]}')
    for r in range(2): rb(mean[r],mean[r])
    ln=[k.v.alloc(4,4),k.v.alloc(4,4)]
    for i in range(4):
        for r in range(2):
            a=f[r]+2*i; b=a+1
            k(f'v_sub_f32 v{a}, v{a}, v{mean[r]}')
            k(f'v_sub_f32 v{b}, v{b}, v{mean[r]}')
            k(f'v_cvt_pk_bf16_f32 v{dv[r]}, v{a}, v{b}')
            k(f'v_lshlrev_b32 v{a}, 16, v{dv[r]}')
            k(f'v_and_b32 v{b}, s30, v{dv[r]}')
            k(f'v_mul_f32 v{a}, v{a}, v{rs[r]}')
            k(f'v_mul_f32 v{b}, v{b}, v{rs[r]}')
            k(f'v_cvt_pk_bf16_f32 v{ln[r]+i}, v{a}, v{b}')
    for r in range(2):
        k(f'ds_write_b128 v{wa}, {V(ln[r],4)} offset:{LSB+r*RS}')
    k('s_waitcnt lgkmcnt(0)')
    k('s_barrier')
    o=[k.v.alloc(4,4) for _ in range(4)]
    n=0
    for arr in range(2):
        for cb in range(2):
            for rr in range(2):
                k(f'ds_read_b64_tr_b16 {V(o[n]+2*rr,2)}, v{ra} offset:{arr*LSB+cb*128+rr*4*RS}')
            n+=1
    k('s_lshl_b32 s24, s20, 11')
    k('s_add_u32 s24, s24, s21')
    n=0
    for arr in range(2):
        for cb in range(2):
            k(f's_waitcnt lgkmcnt({2*(3-n)})')
            k(f'buffer_store_dwordx4 {V(o[n],4)}, v{voff}, s[{12+4*arr}:{15+4*arr}], s24 offen offset:{cb*1024} sc1')
            n+=1
    k('s_endpgm')

RSK=544
CH_LDS=(37+32)*RSK
def role_kgen(k):
    k.c('======== S4D kernel generation: channels 2*(wg-256), +1 ========')
    k('s_load_dwordx4 s[4:7], s[0:1], 8')
    k('s_load_dwordx4 s[8:11], s[0:1], 24')
    k('s_load_dwordx2 s[12:13], s[0:1], 40')
    k('s_load_dwordx2 s[14:15], s[0:1], 112')
    lane=k.v.alloc(); wv=k.v.alloc(); t0=k.v.alloc(); t1=k.v.alloc(); t2=k.v.alloc()
    k(f'v_and_b32 v{lane}, 63, v0')
    k(f'v_lshrrev_b32 v{wv}, 6, v0')
    k('s_sub_u32 s21, s2, 256')
    k(f'v_readfirstlane_b32 s20, v{wv}')
    k('s_lshr_b32 s22, s20, 1')
    k('s_and_b32 s23, s20, 1')
    k('s_lshl_b32 s24, s21, 1')
    k('s_add_u32 s24, s24, s22')
    k('s_lshl_b32 s25, s24, 8')
    k('s_lshl_b32 s26, s23, 7')
    k('s_add_u32 s25, s25, s26')
    voff=k.v.alloc()
    k(f'v_lshlrev_b32 v{voff}, 1, v{lane}')
    k('s_waitcnt lgkmcnt(0)')
    k('s_lshl_b32 s27, s21, 2')
    k('s_load_dword s28, s[12:13], s27')
    for i,(b) in enumerate((4,6,8,10)):
        srd(k,32+4*i,b,0,D*N*2)
    p=[k.v.alloc() for _ in range(4)]
    for i in range(4):
        k(f'buffer_load_ushort v{p[i]}, v{voff}, s[{32+4*i}:{35+4*i}], s25 offen')
    srd(k,48,14,WS_KR,D*KLD+64)
    g=[k.v.alloc() for _ in range(8)]
    k(f'v_lshlrev_b32 v{t0}, 3, v0')
    k(f'v_sub_u32 v{t0}, 2047, v{t0}')
    for i in range(8):
        k(f'v_subrev_u32 v{t1}, {i}, v{t0}')
        k(f'v_cvt_f32_u32 v{t1}, v{t1}')
        k(f'v_cvt_pk_bf16_f32 v{t1}, v{t1}, v{t1}')
        k(f'v_lshlrev_b32 v{t1}, 16, v{t1}')
        k(f'v_cvt_u32_f32 v{t1}, v{t1}')
        k(f'v_and_b32 v{t2}, 1, v{t1}')
        k(f'v_mul_u32_u24 v{t2}, 2111, v{t2}')
        k(f'v_add_u32 v{g[i]}, v{t1}, v{t2}')
    Lhi,Llo=f32split(LOG2E)
    k(f's_mov_b32 s52, {f32hex(Lhi)}')
    k(f's_mov_b32 s53, {f32hex(Llo)}')
    k(f's_mov_b32 s54, {f32hex(0.6931471805599453)}')
    k('s_mov_b32 s30, 0xffff0000')
    def exp_rb(dst,src,ta,tb):
        k(f'v_mul_f32 v{ta}, s52, v{src}')
        k(f'v_fma_f32 v{tb}, v{src}, s52, -v{ta}')
        k(f'v_fmac_f32 v{tb}, s53, v{src}')
        k(f'v_exp_f32 v{ta}, v{ta}')
        k(f'v_mul_f32 v{tb}, s54, v{tb}')
        k(f'v_fma_f32 v{ta}, v{ta}, v{tb}, v{ta}')
        k(f'v_cvt_pk_bf16_f32 v{dst}, v{ta}, v{ta}')
        k(f'v_and_b32 v{dst}, s30, v{dst}')
    dt=k.v.alloc()
    k('s_waitcnt lgkmcnt(0)')
    k('s_lshl_b32 s29, s22, 4')
    k('s_lshr_b32 s28, s28, s29')
    k('s_lshl_b32 s28, s28, 16')
    k(f'v_mov_b32 v{dt}, s28')
    exp_rb(dt,dt,t0,t1)
    k('s_waitcnt vmcnt(0)')
    for i in range(4): k(f'v_lshlrev_b32 v{p[i]}, 16, v{p[i]}')
    zr,zi,cr,ci=p
    exp_rb(zr,zr,t0,t1)
    k(f'v_mul_f32 v{zr}, v{zr}, v{dt}')
    k(f'v_sub_f32 v{zr}, 0, v{zr}')
    k(f'v_mul_f32 v{zi}, v{zi}, v{dt}')
    k(f'v_mul_f32 v{cr}, v{cr}, v{dt}')
    k(f'v_mul_f32 v{ci}, v{ci}, v{dt}')
    k(f'v_add_f32 v{cr}, v{cr}, v{cr}')
    k(f'v_add_f32 v{ci}, v{ci}, v{ci}')
    k(f'v_mul_f32 v{zr}, s52, v{zr}')
    k(f's_mov_b32 s55, {f32hex(0.15915494309189535)}')
    k(f'v_mul_f32 v{zi}, s55, v{zi}')
    def cexp(mult):
        r=k.v.alloc(); i=k.v.alloc()
        k(f's_mov_b32 s56, {f32hex(float(mult))}')
        k(f'v_mul_f32 v{t0}, s56, v{zr}')
        k(f'v_mul_f32 v{t1}, s56, v{zi}')
        k(f'v_exp_f32 v{t0}, v{t0}')
        k(f'v_fract_f32 v{t1}, v{t1}')
        k(f'v_cos_f32 v{r}, v{t1}')
        k(f'v_sin_f32 v{i}, v{t1}')
        k(f'v_mul_f32 v{r}, v{r}, v{t0}')
        k(f'v_mul_f32 v{i}, v{i}, v{t0}')
        return r,i
    w1=cexp(1); w2=cexp(2); W=cexp(64)
    wa=k.v.alloc()
    k(f's_mul_i32 s31, s22, {CH_LDS}')
    k('s_lshl_b32 s57, s23, 8')
    k('s_add_u32 s57, s57, s31')
    k(f'v_lshlrev_b32 v{wa}, 2, v{lane}')
    k(f'v_add_u32 v{wa}, s57, v{wa}')
    ar=[k.v.alloc(),k.v.alloc()]; ai=[k.v.alloc(),k.v.alloc()]
    br=[k.v.alloc(),k.v.alloc()]; bi=[k.v.alloc(),k.v.alloc()]
    pk=[k.v.alloc() for _ in range(4)]
    def cmul(dr,di,xr,xi,wr,wi):
        k(f'v_mul_f32 v{dr}, v{xr}, v{wr}')
        k(f'v_mul_f32 v{di}, v{xr}, v{wi}')
        k(f'v_fma_f32 v{dr}, -v{xi}, v{wi}, v{dr}')
        k(f'v_fmac_f32 v{di}, v{xi}, v{wr}')
    k(f'v_mov_b32 v{ar[0]}, v{cr}')
    k(f'v_mov_b32 v{ai[0]}, v{ci}')
    k(f'v_mov_b32 v{br[0]}, 1.0')
    k(f'v_mov_b32 v{bi[0]}, 0')
    orr=k.v.alloc(); oi=k.v.alloc()
    npk=0
    def put(row,r,i,neg):
        nonlocal npk
        q=pk[npk%4]; npk+=1
        k(f'v_cvt_pk_bf16_f32 v{q}, v{r}, {"-" if neg else ""}v{i}')
        k(f'ds_write_b32 v{wa}, v{q} offset:{row*RSK}')
    for i in range(33):
        cur=i&1; nx=cur^1
        put(i,ar[cur],ai[cur],True)
        if i<32: put(37+i,br[cur],bi[cur],False)
        if i<4:
            cmul(orr,oi,ar[cur],ai[cur],w1[0],w1[1])
            put(33+i,orr,oi,True)
        if i<32: cmul(ar[nx],ai[nx],ar[cur],ai[cur],W[0],W[1])
        if i<31: cmul(br[nx],bi[nx],br[cur],bi[cur],w2[0],w2[1])
    k('s_waitcnt lgkmcnt(0)')
    k('s_barrier')
    aa=k.v.alloc(); ba=k.v.alloc()
    k(f'v_and_b32 v{t0}, 15, v{lane}')
    k(f'v_mul_u32_u24 v{aa}, {RSK}, v{t0}')
    k(f'v_lshrrev_b32 v{t1}, 4, v{lane}')
    k(f'v_lshlrev_b32 v{t1}, 4, v{t1}')
    k(f'v_add3_u32 v{aa}, v{aa}, v{t1}, s31')
    k(f's_mul_i32 s57, s23, {16*RSK}')
    k(f's_add_u32 s57, s57, {37*RSK}')
    k(f'v_add_u32 v{ba}, s57, v{aa}')
    acc=[k.v.alloc(4,4) for _ in range(3)]
    for a in acc:
        for r in range(4): k(f'v_mov_b32 v{a+r}, 0')
    fa=[[k.v.alloc(4,4) for _ in range(3)] for _ in range(2)]
    fb=[k.v.alloc(4,4) for _ in range(2)]
    def ld(ks):
        s=ks&1
        k(f'ds_read_b128 {V(fb[s],4)}, v{ba} offset:{ks*64}')
        for mt in range(3):
            k(f'ds_read_b128 {V(fa[s][mt],4)}, v{aa} offset:{mt*16*RSK+ks*64}')
    ld(0)
    for ks in range(8):
        if ks<7:
            ld(ks+1); k('s_waitcnt lgkmcnt(4)')
        else: k('s_waitcnt lgkmcnt(0)')
        s=ks&1
        for mt in range(3):
            k(f'v_mfma_f32_16x16x32_bf16 {V(acc[mt],4)}, {V(fa[s][mt],4)}, {V(fb[s],4)}, {V(acc[mt],4)}')
    k('s_barrier')
    ta=k.v.alloc()
    k(f'v_lshrrev_b32 v{t1}, 4, v{lane}')
    k(f'v_lshlrev_b32 v{t1}, 8, v{t1}')
    k(f'v_lshlrev_b32 v{t0}, 1, v{t0}')
    k(f's_lshl_b32 s57, s23, 5')
    k(f's_add_u32 s57, s57, s31')
    k(f'v_add3_u32 v{ta}, v{t0}, v{t1}, s57')
    for mt in range(3):
        for h in range(2):
            q=pk[(2*mt+h)%4]
            k(f'v_cvt_pk_bf16_f32 v{q}, v{acc[mt]+2*h}, v{acc[mt]+2*h+1}')
            k(f'ds_write_b16 v{ta}, v{q} offset:{(16*mt+2*h)*64}')
            k(f'ds_write_b16_d16_hi v{ta}, v{q} offset:{(16*mt+2*h+1)*64}')
    k('s_waitcnt lgkmcnt(0)')
    k('s_barrier')
    o=[k.v.alloc(4,4),k.v.alloc(4,4)]
    gl=[k.v.alloc(8),k.v.alloc(8)]
    for c in range(2):
        for i in range(8):
            k(f'ds_read_u16 v{gl[c]+i}, v{g[i]} offset:{c*CH_LDS}')
    so=k.v.alloc()
    k(f'v_lshlrev_b32 v{so}, 4, v0')
    k(f's_mul_i32 s58, s21, {2*KLD}')
    k(f's_add_u32 s59, s58, {KLD}')
    for c in range(2):
        k(f's_waitcnt lgkmcnt({8*(1-c)})')
        for i in range(4):
            k(f'v_lshl_or_b32 v{o[c]+i}, v{gl[c]+2*i+1}, 16, v{gl[c]+2*i}')
        k(f'buffer_store_dwordx4 {V(o[c],4)}, v{so}, s[48:51], s{58+c} offen sc1')
    z=k.v.alloc(4,4)
    for r in range(4): k(f'v_mov_b32 v{z+r}, 0')
    k(f'v_lshrrev_b32 v{t0}, 2, v0')
    k(f'v_mul_u32_u24 v{t0}, {KLD}, v{t0}')
    k(f'v_and_b32 v{t1}, 3, v0')
    k(f'v_lshlrev_b32 v{t1}, 4, v{t1}')
    k(f'v_add3_u32 v{t0}, v{t0}, v{t1}, s58')
    k(f'v_add_u32 v{t0}, 4096, v{t0}')
    k(f'v_cmp_gt_u32 vcc, 8, v0')
    k('s_and_saveexec_b64 s[60:61], vcc')
    lz=k.lab('kz')
    k(f's_cbranch_execz {lz}')
    k(f'buffer_store_dwordx4 {V(z,4)}, v{t0}, s[48:51], 0 offen sc1')
    k.label(lz)
    k('s_endpgm')

def role_cs(k):
    k.c('======== column sums of W1 (f32) and b1 as f32 : 64 columns per workgroup ========')
    k('s_load_dwordx4 s[4:7], s[0:1], 64')
    k('s_load_dwordx2 s[14:15], s[0:1], 112')
    lane=k.v.alloc(); voff=k.v.alloc(); t0=k.v.alloc(); t1=k.v.alloc()
    k('s_sub_u32 s21, s2, 512')
    k(f'v_and_b32 v{lane}, 63, v0')
    k(f'v_lshrrev_b32 v{t0}, 3, v0')
    k(f'v_mul_u32_u24 v{voff}, {F*2}, v{t0}')
    k(f'v_and_b32 v{t1}, 7, v0')
    k(f'v_lshlrev_b32 v{t1}, 4, v{t1}')
    k(f'v_add_u32 v{voff}, v{voff}, v{t1}')
    k('s_lshl_b32 s22, s21, 7')
    k('s_waitcnt lgkmcnt(0)')
    srd(k,8,4,0,D*F*2)
    srd(k,16,14,WS_CS,16384)
    srd(k,24,6,0,F*2)
    x=[k.v.alloc(4,4) for _ in range(16)]
    for i in range(16):
        k(f's_add_u32 s23, s22, {i*32*F*2}')
        k(f'buffer_load_dwordx4 {V(x[i],4)}, v{voff}, s[8:11], s23 offen')
    bq=k.v.alloc()
    k(f'v_lshlrev_b32 v{t1}, 1, v{lane}')
    k(f'buffer_load_ushort v{bq}, v{t1}, s[24:27], s22 offen')
    acc=k.v.alloc(8)
    k('s_mov_b32 s30, 0xffff0000')
    for i in range(16):
        k(f's_waitcnt vmcnt({16-i})')
        for j in range(4):
            if i==0:
                k(f'v_lshlrev_b32 v{acc+2*j}, 16, v{x[i]+j}')
                k(f'v_and_b32 v{acc+2*j+1}, s30, v{x[i]+j}')
            else:
                k(f'v_lshlrev_b32 v{t0}, 16, v{x[i]+j}')
                k(f'v_and_b32 v{t1}, s30, v{x[i]+j}')
                k(f'v_add_f32 v{acc+2*j}, v{acc+2*j}, v{t0}')
                k(f'v_add_f32 v{acc+2*j+1}, v{acc+2*j+1}, v{t1}')
    wa=k.v.alloc()
    k(f'v_lshrrev_b32 v{t0}, 3, v0')
    k(f'v_lshlrev_b32 v{wa}, 8, v{t0}')
    k(f'v_and_b32 v{t1}, 7, v0')
    k(f'v_lshlrev_b32 v{t1}, 5, v{t1}')
    k(f'v_add_u32 v{wa}, v{wa}, v{t1}')
    for j in range(8):
        k(f'ds_write_b32 v{wa}, v{acc+j} offset:{4*j}')
    k('s_waitcnt lgkmcnt(0)')
    k('s_barrier')
    k(f'v_cmp_gt_u32 vcc, 64, v0')
    k('s_and_saveexec_b64 s[60:61], vcc')
    lz=k.lab('csx')
    k(f's_cbranch_execz {lz}')
    ra=k.v.alloc(); s=k.v.alloc()
    k(f'v_lshlrev_b32 v{ra}, 2, v{lane}')
    tt=[x[0]+i for i in range(32)]
    for i in range(32):
        k(f'ds_read_b32 v{tt[i]}, v{ra} offset:{i*256}')
        if i%8==7:
            k('s_waitcnt lgkmcnt(0)')
            for j in range(i-7,i+1):
                if j==0: k(f'v_mov_b32 v{s}, v{tt[0]}')
                else: k(f'v_add_f32 v{s}, v{s}, v{tt[j]}')
    k('s_lshl_b32 s23, s21, 8')
    k(f'buffer_store_dword v{s}, v{ra}, s[16:19], s23 offen sc1')
    k('s_waitcnt vmcnt(1)')
    k(f'v_lshlrev_b32 v{bq}, 16, v{bq}')
    k('s_add_u32 s23, s23, 8192')
    k(f'buffer_store_dword v{bq}, v{ra}, s[16:19], s23 offen sc1')
    k.label(lz)
    k('s_endpgm')

def build_k1(name='k1_prep_kernel'):
    k=KB(name)
    k('.text'); k(f'.globl {name}'); k('.p2align 8'); k(f'.type {name},@function'); k.label(name)
    lk=k.lab('kgen'); lc=k.lab('cs'); lx=k.lab('exit')
    k('s_cmp_ge_u32 s2, 540'); k(f's_cbranch_scc1 {lx}')
    k('s_cmp_ge_u32 s2, 512'); k(f's_cbranch_scc1 {lc}')
    k('s_cmp_ge_u32 s2, 256'); k(f's_cbranch_scc1 {lk}')
    m=k.v.mark(); role_ln(k); k.v.release(m)
    k.label(lk); role_kgen(k); k.v.release(m)
    k.label(lc); role_cs(k); k.v.release(m)
    k.label(lx); k('s_endpgm')
    return k, dict(name=name,grid=540,block=256,lds=2*CH_LDS,vgpr=k.v.maxused+1,sgpr=64)
```

```python
from kb import *
from k1 import *
CHB=17088; LP=0; LO=512; XO=4608; EO=8704; OO=12864
def build_k2(name='k2_conv_kernel', mimic=True):
    k=KB(name)
    k('.text'); k(f'.globl {name}'); k('.p2align 8'); k(f'.type {name},@function'); k.label(name)
    lx=k.lab('exit')
    k('s_cmp_ge_u32 s2, 256'); k(f's_cbranch_scc1 {lx}')
    k('s_load_dwordx2 s[4:5], s[0:1], 48')
    k('s_load_dwordx2 s[6:7], s[0:1], 112')
    lane=k.v.alloc(); wv=k.v.alloc(); t0=k.v.alloc(); t1=k.v.alloc(); t2=k.v.alloc()
    k(f'v_and_b32 v{lane}, 63, v0')
    k(f'v_lshrrev_b32 v{wv}, 6, v0')
    k('s_and_b32 s21, s2, 7'); k('s_lshl_b32 s21, s21, 5'); k('s_lshr_b32 s22, s2, 3'); k('s_add_u32 s21, s21, s22')
    k(f'v_readfirstlane_b32 s20, v{wv}')
    k('s_lshl_b32 s24, s21, 1')
    vlx=k.v.alloc(); vk=k.v.alloc()
    k(f'v_lshrrev_b32 v{t0}, 1, v0')
    k(f'v_lshlrev_b32 v{vlx}, 13, v{t0}')
    k(f'v_and_b32 v{t1}, 1, v0')
    k(f'v_lshl_add_u32 v{vlx}, v{t1}, 4, v{vlx}')
    k(f'v_lshrrev_b32 v{t2}, 7, v0')
    k(f'v_mul_u32_u24 v{vk}, {KLD}, v{t2}')
    k(f'v_and_b32 v{t0}, 127, v0')
    k(f'v_lshl_add_u32 v{vk}, v{t0}, 4, v{vk}')
    k('s_lshr_b32 s22, s20, 1')
    k('s_and_b32 s23, s20, 1')
    k('s_waitcnt lgkmcnt(0)')
    k('s_lshl_b32 s27, s21, 2')
    k('s_load_dword s28, s[4:5], s27')
    srd(k,8,6,WS_LG,2<<20)
    srd(k,12,6,WS_XG,2<<20)
    srd(k,16,6,WS_KR,D*KLD+64)
    srd(k,32,6,WS_HB,2<<20)
    k('s_lshl_b32 s25, s24, 4')
    k(f's_add_u32 s26, s25, {128*8192}')
    ld=[k.v.alloc(4,4) for _ in range(4)]
    k(f'buffer_load_dwordx4 {V(ld[0],4)}, v{vlx}, s[8:11], s25 offen')
    k(f'buffer_load_dwordx4 {V(ld[1],4)}, v{vlx}, s[8:11], s26 offen')
    k(f's_mul_i32 s29, s24, {KLD}')
    kk=[k.v.alloc(4,4) for _ in range(3)]; kn=[k.v.alloc() for _ in range(3)]
    for j in range(2):
        k(f'buffer_load_dwordx4 {V(kk[j],4)}, v{vk}, s[16:19], s29 offen offset:{j*2048}')
        k(f'buffer_load_dword v{kn[j]}, v{vk}, s[16:19], s29 offen offset:{j*2048+16}')
    k(f'buffer_load_dwordx4 {V(ld[2],4)}, v{vlx}, s[12:15], s25 offen')
    k(f'buffer_load_dwordx4 {V(ld[3],4)}, v{vlx}, s[12:15], s26 offen')
    wl=k.v.alloc(); wk=k.v.alloc(); wz=k.v.alloc()
    k(f'v_and_b32 v{t1}, 1, v0')
    k(f'v_mul_u32_u24 v{wl}, {CHB}, v{t1}')
    k(f'v_lshrrev_b32 v{t0}, 1, v0')
    k(f'v_lshl_add_u32 v{wl}, v{t0}, 4, v{wl}')
    k(f'v_mul_u32_u24 v{wk}, {CHB}, v{t2}')
    k(f'v_and_b32 v{t0}, 127, v0')
    k(f'v_lshl_add_u32 v{wk}, v{t0}, 4, v{wk}')
    z=k.v.alloc(4,4)
    for r in range(4): k(f'v_mov_b32 v{z+r}, 0')
    k(f'v_bfe_u32 v{t0}, v0, 5, 1')
    k(f'v_mul_u32_u24 v{wz}, {CHB}, v{t0}')
    k(f'v_and_b32 v{t0}, 31, v0')
    k(f'v_lshl_add_u32 v{wz}, v{t0}, 4, v{wz}')
    k(f'v_cmp_gt_u32 vcc, 64, v0')
    k('s_and_saveexec_b64 s[40:41], vcc')
    l1=k.lab('z1'); k(f's_cbranch_execz {l1}')
    k(f'ds_write_b128 v{wz}, {V(z,4)} offset:{LP}')
    k.label(l1); k('s_mov_b64 exec, s[40:41]')
    k(f'v_bfe_u32 v{t0}, v0, 2, 1')
    k(f'v_mul_u32_u24 v{wz}, {CHB}, v{t0}')
    k(f'v_bfe_u32 v{t0}, v0, 1, 1')
    k(f'v_mul_u32_u24 v{t0}, {OO-EO}, v{t0}')
    k(f'v_and_b32 v{t1}, 1, v0')
    k(f'v_lshlrev_b32 v{t1}, 4, v{t1}')
    k(f'v_add3_u32 v{wz}, v{wz}, v{t0}, v{t1}')
    k(f'v_lshrrev_b32 v{t0}, 3, v0')
    k(f'v_cmp_eq_u32 vcc, 8, v{t0}')
    k('s_and_saveexec_b64 s[40:41], vcc')
    l2=k.lab('z2'); k(f's_cbranch_execz {l2}')
    k(f'ds_write_b128 v{wz}, {V(z,4)} offset:{EO+4096}')
    k.label(l2); k('s_mov_b64 exec, s[40:41]')
    vB=k.v.alloc(); vA=[k.v.alloc() for _ in range(4)]
    k(f's_mul_i32 s30, s22, {CHB}')
    k('s_lshl_b32 s31, s23, 8')
    k(f'v_and_b32 v{t0}, 15, v{lane}')
    k(f'v_lshrrev_b32 v{t1}, 4, v{lane}')
    k(f'v_lshlrev_b32 v{vB}, 5, v{t0}')
    k(f'v_lshl_add_u32 v{vB}, v{t1}, 4, v{vB}')
    k(f's_sub_u32 s36, s30, s31')
    k(f's_add_u32 s37, s36, {LO-32-192}')
    k(f'v_add_u32 v{vB}, s37, v{vB}')
    k(f'v_sub_u32 v{t2}, 2031, v{t0}')
    k(f'v_lshrrev_b32 v{t2}, 1, v{t2}')
    k(f'v_lshlrev_b32 v{t2}, 2, v{t2}')
    k(f'v_lshl_add_u32 v{t2}, v{t1}, 4, v{t2}')
    k(f'v_and_b32 v{t0}, 1, v{t0}')
    k(f'v_mul_u32_u24 v{t0}, {OO-EO}, v{t0}')
    k(f'v_sub_u32 v{t2}, v{t2}, v{t0}')
    k(f's_add_u32 s37, s36, {OO-192-3584}')
    for j in range(4):
        k(f's_add_u32 s38, s37, {1024*j}')
        k(f'v_add_u32 v{vA[j]}, s38, v{t2}')
    k('s_waitcnt vmcnt(6)')
    k(f'ds_write_b128 v{wl}, {V(ld[0],4)} offset:{LO}')
    k(f'ds_write_b128 v{wl}, {V(ld[1],4)} offset:{LO+2048}')
    od=k.v.alloc(4,4)
    for j in range(2):
        k(f's_waitcnt vmcnt({4-2*j})')
        k(f'ds_write_b128 v{wk}, {V(kk[j],4)} offset:{EO+j*2048}')
        for r in range(3):
            k(f'v_alignbyte_b32 v{od+r}, v{kk[j]+r+1}, v{kk[j]+r}, 2')
        k(f'v_alignbyte_b32 v{od+3}, v{kn[j]}, v{kk[j]+3}, 2')
        k(f'ds_write_b128 v{wk}, {V(od,4)} offset:{OO+j*2048}')
    k('s_waitcnt vmcnt(0)')
    k(f'ds_write_b128 v{wl}, {V(ld[2],4)} offset:{XO}')
    k(f'ds_write_b128 v{wl}, {V(ld[3],4)} offset:{XO+2048}')
    acc=[k.v.alloc(4,4) for _ in range(8)]
    for a in acc:
        for r in range(4): k(f'v_mov_b32 v{a+r}, 0')
    fB=[[k.v.alloc(4,4) for _ in range(8)] for _ in range(2)]
    fA=[[k.v.alloc(4,4) for _ in range(8)] for _ in range(2)]
    k('s_waitcnt lgkmcnt(0)')
    k('s_barrier')
    def loads(i):
        p=i&1; out=[]
        for s in range(8):
            out.append(f'ds_read_b128 {V(fB[p][s],4)}, v{vB} offset:{64*(3-i)+512*s}')
        al=[]
        for s in range(8):
            j=(7-s)//2; hi=0 if (7-2*j)==s else 128
            o=16*(3-i)+hi
            al.append(f'ds_read2_b32 {V(fA[p][s],2)}, v{vA[j]} offset0:{o} offset1:{o+1}')
            al.append(f'ds_read2_b32 {V(fA[p][s]+2,2)}, v{vA[j]} offset0:{o+2} offset1:{o+3}')
        return al[:2]+out+al[2:]
    for l in loads(0): k(l)
    k('s_waitcnt lgkmcnt(0)')
    for i in range(4):
        p=i&1
        nxt=loads(i+1) if i<3 else []
        n=0
        for s in range(8):
            for tp in range(8-s):
                k(f'v_mfma_f32_16x16x32_bf16 {V(acc[s+tp],4)}, {V(fA[p][s],4)}, {V(fB[p][tp],4)}, {V(acc[s+tp],4)}')
                if n<len(nxt): k(nxt[n]); n+=1
        if i<3: k('s_waitcnt lgkmcnt(0)')
    k('s_barrier')
    pa=k.v.alloc(); pr=k.v.alloc()
    k(f'v_lshlrev_b32 v{pa}, 4, v{lane}')
    k(f's_lshl_b32 s36, s23, 12')
    k(f's_add_u32 s37, s30, {EO}')
    k(f's_add_u32 s38, s37, s36')
    k(f's_xor_b32 s36, s36, 4096')
    k(f's_add_u32 s39, s37, s36')
    k(f'v_add_u32 v{pr}, s39, v{pa}')
    k(f'v_add_u32 v{pa}, s38, v{pa}')
    lA=k.lab('snd1'); lB=k.lab('sndx')
    k('s_cmp_eq_u32 s23, 0'); k(f's_cbranch_scc0 {lA}')
    for j in range(4): k(f'ds_write_b128 v{pa}, {V(acc[4+j],4)} offset:{j*1024}')
    k(f's_branch {lB}')
    k.label(lA)
    for j in range(4): k(f'ds_write_b128 v{pa}, {V(acc[j],4)} offset:{j*1024}')
    k.label(lB)
    ea=k.v.alloc(); so=k.v.alloc()
    k(f'v_and_b32 v{t0}, 15, v{lane}')
    k(f'v_lshrrev_b32 v{t1}, 4, v{lane}')
    k(f'v_lshlrev_b32 v{ea}, 5, v{t0}')
    k(f'v_lshl_add_u32 v{ea}, v{t1}, 3, v{ea}')
    k(f'v_add_u32 v{ea}, s30, v{ea}')
    k(f'v_lshrrev_b32 v{t2}, 3, v{t0}')
    k(f'v_lshlrev_b32 v{so}, 17, v{t2}')
    k(f'v_and_b32 v{t0}, 7, v{t0}')
    k(f'v_lshl_add_u32 v{so}, v{t0}, 5, v{so}')
    k(f'v_lshl_add_u32 v{so}, v{t1}, 3, v{so}')
    k('s_lshl_b32 s29, s22, 4'); k('s_lshr_b32 s28, s28, s29'); k('s_lshl_b32 s28, s28, 16')
    k('s_add_u32 s24, s24, s22'); k('s_lshl_b32 s24, s24, 8')
    k('s_mov_b32 s42, 0xffff0000')
    k('s_waitcnt lgkmcnt(0)')
    k('s_barrier')
    part=[fB[0][j] for j in range(4)]
    lnr=[fB[0][4+j//2]+2*(j%2) for j in range(4)]
    xr=[fB[0][6+j//2]+2*(j%2) for j in range(4)]
    T=[fA[0][0]+i for i in range(4)]+[fA[0][1]+i for i in range(4)]
    def epi(keep):
        for j in range(4):
            k(f'ds_read_b128 {V(part[j],4)}, v{pr} offset:{j*1024}')
        for j in range(4):
            t=keep+j
            k(f'ds_read_b64 {V(lnr[j],2)}, v{ea} offset:{LO+512*t}')
            k(f'ds_read_b64 {V(xr[j],2)}, v{ea} offset:{XO+512*t}')
        k('s_waitcnt lgkmcnt(0)')
        for j in range(4):
            t=keep+j; a=acc[t]
            for r in range(4): k(f'v_add_f32 v{a+r}, v{a+r}, v{part[j]+r}')
            for h in range(2):
                y0=a+2*h; y1=y0+1; l=lnr[j]+h; x=xr[j]+h
                a0,a1,b0,b1=T[0],T[1],T[2],T[3]
                k(f'v_lshlrev_b32 v{a0}, 16, v{l}')
                k(f'v_and_b32 v{a1}, s42, v{l}')
                if mimic:
                    k(f'v_mul_f32 v{a0}, s28, v{a0}')
                    k(f'v_mul_f32 v{a1}, s28, v{a1}')
                    k(f'v_cvt_pk_bf16_f32 v{b0}, v{a0}, v{a1}')
                    k(f'v_cvt_pk_bf16_f32 v{b1}, v{y0}, v{y1}')
                    k(f'v_lshlrev_b32 v{a0}, 16, v{b0}')
                    k(f'v_and_b32 v{a1}, s42, v{b0}')
                    k(f'v_lshlrev_b32 v{y0}, 16, v{b1}')
                    k(f'v_and_b32 v{y1}, s42, v{b1}')
                    k(f'v_add_f32 v{a0}, v{a0}, v{y0}')
                    k(f'v_add_f32 v{a1}, v{a1}, v{y1}')
                    k(f'v_cvt_pk_bf16_f32 v{b0}, v{a0}, v{a1}')
                    k(f'v_lshlrev_b32 v{a0}, 16, v{b0}')
                    k(f'v_and_b32 v{a1}, s42, v{b0}')
                else:
                    k(f'v_fma_f32 v{a0}, v{a0}, s28, v{y0}')
                    k(f'v_fma_f32 v{a1}, v{a1}, s28, v{y1}')
                k(f'v_lshlrev_b32 v{b0}, 16, v{x}')
                k(f'v_and_b32 v{b1}, s42, v{x}')
                k(f'v_add_f32 v{a0}, v{a0}, v{b0}')
                k(f'v_add_f32 v{a1}, v{a1}, v{b1}')
                k(f'v_cvt_pk_bf16_f32 v{T[4+(j&1)*2+h]}, v{a0}, v{a1}')
            k(f's_add_u32 s43, s24, {t*262144}')
            k(f'buffer_store_dwordx2 {V(T[4+(j&1)*2],2)}, v{so}, s[32:35], s43 offen sc1')
    lC=k.lab('epi1')
    k('s_cmp_eq_u32 s23, 0'); k(f's_cbranch_scc0 {lC}')
    epi(0); k('s_endpgm')
    k.label(lC); epi(4)
    k.label(lx); k('s_endpgm')
    return k, dict(name=name,grid=256,block=256,lds=2*CHB,vgpr=k.v.maxused+1,sgpr=48)
```

```python
from kb import *
from k1 import *
import math
SLOT=30720; WOFF=16384
def build_k3(name='k3_ffn1_kernel', store_flags='sc1'):
    k=KB(name)
    k('.text'); k(f'.globl {name}'); k('.p2align 8'); k(f'.type {name},@function'); k.label(name)
    lx=k.lab('exit')
    k('s_cmp_ge_u32 s2, 256'); k(f's_cbranch_scc1 {lx}')
    k('s_load_dwordx2 s[4:5], s[0:1], 64')
    k('s_load_dwordx2 s[6:7], s[0:1], 112')
    lane=k.v.alloc(); wv=k.v.alloc(); t0=k.v.alloc(); t1=k.v.alloc(); t2=k.v.alloc(); t3=k.v.alloc()
    k(f'v_and_b32 v{lane}, 63, v0')
    k(f'v_lshrrev_b32 v{wv}, 6, v0')
    k('s_and_b32 s21, s2, 7'); k('s_lshr_b32 s22, s2, 3')
    k('s_lshr_b32 s23, s22, 4'); k('s_lshl_b32 s21, s21, 1'); k('s_add_u32 s21, s21, s23')
    k('s_and_b32 s22, s22, 15')
    k(f'v_readfirstlane_b32 s20, v{wv}')
    k('s_and_b32 s23, s22, 1')
    vh=[k.v.alloc(),k.v.alloc()]
    for q in range(2):
        k(f'v_lshrrev_b32 v{t0}, 4, v{lane}')
        k(f'v_add_u32 v{t1}, {4*q}, v{t0}')
        k(f'v_bfe_u32 v{t2}, v{lane}, 1, 3')
        k(f'v_xor_b32 v{t1}, v{t1}, v{t2}')
        k(f'v_lshlrev_b32 v{t1}, 5, v{t1}')
        k(f'v_lshl_add_u32 v{t1}, v{t0}, 8, v{t1}')
        k(f'v_and_b32 v{t2}, 1, v{lane}')
        k(f'v_lshl_add_u32 v{vh[q]}, v{t2}, 4, v{t1}')
    vw=[k.v.alloc() for _ in range(4)]
    k('s_mov_b32 s40, 4682')
    sj=[44,45,46,47]
    k(f's_mov_b32 s44, s20'); k('s_add_u32 s45, s20, 4'); k('s_add_u32 s46, s20, 8')
    k('s_and_b32 s47, s20, 1'); k('s_add_u32 s47, s47, 12')
    for q in range(4):
        k(f's_lshl_b32 s41, s{sj[q]}, 6')
        k(f'v_add_u32 v{t0}, s41, v{lane}')
        k(f'v_mul_u32_u24 v{t1}, s40, v{t0}')
        k(f'v_lshrrev_b32 v{t1}, 16, v{t1}')
        k(f'v_mul_u32_u24 v{t2}, 14, v{t1}')
        k(f'v_sub_u32 v{t2}, v{t0}, v{t2}')
        k(f'v_mul_u32_u24 v{t1}, {F*2}, v{t1}')
        k(f'v_lshl_add_u32 v{vw[q]}, v{t2}, 4, v{t1}')
        k(f's_lshl_b32 s{sj[q]}, s{sj[q]}, 10')
        k(f's_add_u32 s{sj[q]}, s{sj[q]}, {WOFF}')
    k('s_waitcnt lgkmcnt(0)')
    srd(k,8,6,WS_HB,2<<20)
    srd(k,12,4,0,D*F*2)
    srd(k,16,6,WS_CS,16384)
    srd(k,32,6,WS_H1,L*F*2)
    cs=[k.v.alloc(4,4) for _ in range(7)]; b1=[k.v.alloc(4,4) for _ in range(7)]
    vq=k.v.alloc()
    k(f'v_lshrrev_b32 v{t0}, 4, v{lane}')
    k(f'v_lshlrev_b32 v{vq}, 4, v{t0}')
    k('s_mul_i32 s24, s22, 448')
    k('s_lshl_b32 s25, s23, 6')
    k('s_add_u32 s26, s24, s25')
    k('s_mul_i32 s27, s23, 384'); k('s_sub_u32 s27, 384, s27'); k('s_add_u32 s27, s27, s24')
    k('s_add_u32 s28, s26, 8192'); k('s_add_u32 s29, s27, 8192')
    for j in range(7):
        if j<6:
            k(f'buffer_load_dwordx4 {V(cs[j],4)}, v{vq}, s[16:19], s26 offen offset:{64*j}')
            k(f'buffer_load_dwordx4 {V(b1[j],4)}, v{vq}, s[16:19], s28 offen offset:{64*j}')
        else:
            k(f'buffer_load_dwordx4 {V(cs[j],4)}, v{vq}, s[16:19], s27 offen')
            k(f'buffer_load_dwordx4 {V(b1[j],4)}, v{vq}, s[16:19], s29 offen')
    k('s_lshl_b32 s48, s21, 17')
    k('s_lshl_b32 s49, s20, 12')
    k('s_add_u32 s48, s48, s49')
    k('s_mul_i32 s50, s22, 224')
    def dma(ch):
        sb=(ch%5)*SLOT
        for q in range(4):
            k(f's_add_u32 m0, s49, {sb+q*1024}')
            k(f's_add_u32 s51, s48, {ch*16384+q*1024}')
            k(f'buffer_load_dwordx4 v{vh[q&1]}, s[8:11], s51 offen lds')
        for q in range(4):
            k(f's_add_u32 m0, s{sj[q]}, {sb}')
            k(f's_add_u32 s51, s50, {ch*64*F*2}')
            k(f'buffer_load_dwordx4 v{vw[q]}, s[12:15], s51 offen lds')
    for ch in range(4): dma(ch)
    vH=[[k.v.alloc() for _ in range(2)] for _ in range(3)]
    vWa=[k.v.alloc() for _ in range(3)]; vWb=[k.v.alloc() for _ in range(3)]
    k(f'v_lshrrev_b32 v{t0}, 2, v{lane}')
    k(f'v_and_b32 v{t1}, 7, v{t0}')
    k(f'v_and_b32 v{t3}, 3, v{lane}')
    k(f'v_lshlrev_b32 v{t3}, 3, v{t3}')
    k('s_lshl_b32 s41, s20, 1')
    for c in range(2):
        k(f's_add_u32 s42, s41, {c}')
        k(f'v_xor_b32 v{t2}, s42, v{t1}')
        k(f'v_lshlrev_b32 v{t2}, 5, v{t2}')
        k(f'v_lshl_add_u32 v{t2}, v{t0}, 8, v{t2}')
        k(f'v_add_u32 v{vH[0][c]}, v{t2}, v{t3}')
    k(f'v_mul_u32_u24 v{t2}, 224, v{t0}')
    k(f'v_add_u32 v{t2}, v{t2}, v{t3}')
    k('s_lshl_b32 s41, s23, 5'); k(f's_add_u32 s41, s41, {WOFF}')
    k(f'v_add_u32 v{vWa[0]}, s41, v{t2}')
    k('s_mul_i32 s41, s23, 192'); k(f's_sub_u32 s41, {WOFF+192}, s41')
    k(f'v_add_u32 v{vWb[0]}, s41, v{t2}')
    for st in (1,2):
        for c in range(2): k(f'v_add_u32 v{vH[st][c]}, {st*2*SLOT}, v{vH[0][c]}')
        k(f'v_add_u32 v{vWa[st]}, {st*2*SLOT}, v{vWa[0]}')
        k(f'v_add_u32 v{vWb[st]}, {st*2*SLOT}, v{vWb[0]}')
    acc=[[k.v.alloc(4,4) for _ in range(2)] for _ in range(7)]
    ssum=[k.v.alloc(4,4) for _ in range(2)]; ssq=[k.v.alloc(4,4) for _ in range(2)]
    ones=k.v.alloc(4,4)
    for a in sum(acc,[])+ssum+ssq:
        for r in range(4): k(f'v_mov_b32 v{a+r}, 0')
    k('s_mov_b32 s41, 0x3f803f80')
    for r in range(4): k(f'v_mov_b32 v{ones+r}, s41')
    fH=[[k.v.alloc(4,4) for _ in range(2)] for _ in range(2)]
    fW=[[k.v.alloc(4,4) for _ in range(7)] for _ in range(2)]
    def reads(s):
        ch=s>>1; ks=s&1; slot=ch%5; st=slot//2; sb=(slot%2)*SLOT; p=s&1; out=[]
        for c in range(2):
            for rr in range(2):
                out.append(f'ds_read_b64_tr_b16 {V(fH[p][c]+2*rr,2)}, v{vH[st][c]} offset:{sb+(32*ks+16*rr)*256}')
        for j in range(7):
            for rr in range(2):
                if j<6: out.append(f'ds_read_b64_tr_b16 {V(fW[p][j]+2*rr,2)}, v{vWa[st]} offset:{sb+(32*ks+16*rr)*224+32*j}')
                else: out.append(f'ds_read_b64_tr_b16 {V(fW[p][j]+2*rr,2)}, v{vWb[st]} offset:{sb+(32*ks+16*rr)*224}')
        return out
    k('s_waitcnt vmcnt(24)')
    k('s_barrier')
    dma(4)
    for l in reads(0): k(l)
    for s in range(16):
        p=s&1
        k('s_waitcnt lgkmcnt(0)')
        nxt=[]
        if s<15:
            if (s+1)%2==0:
                c1=(s+1)//2
                last=min(c1+3,7)
                k(f's_waitcnt vmcnt({8*(last-c1)})')
                k('s_barrier')
                if c1+4<=7: dma(c1+4)
            nxt=reads(s+1)
        mf=[]
        for c in range(2):
            mf.append(f'v_mfma_f32_16x16x32_bf16 {V(ssum[c],4)}, {V(ones,4)}, {V(fH[p][c],4)}, {V(ssum[c],4)}')
            mf.append(f'v_mfma_f32_16x16x32_bf16 {V(ssq[c],4)}, {V(fH[p][c],4)}, {V(fH[p][c],4)}, {V(ssq[c],4)}')
        for j in range(7):
            for c in range(2):
                mf.append(f'v_mfma_f32_16x16x32_bf16 {V(acc[j][c],4)}, {V(fW[p][j],4)}, {V(fH[p][c],4)}, {V(acc[j][c],4)}')
        n=0
        for m in mf:
            k(m)
            if n<len(nxt): k(nxt[n]); n+=1
    sel=k.v.alloc(); bp=k.v.alloc()
    rstd=[k.v.alloc(2,2) for _ in range(2)]; nmr=[k.v.alloc(2,2) for _ in range(2)]
    k(f'v_and_b32 v{t0}, 15, v{lane}')
    k(f'v_lshrrev_b32 v{t1}, 2, v{t0}')
    k(f'v_lshl_add_u32 v{bp}, v{t1}, 4, v{t0}')
    k(f'v_lshlrev_b32 v{bp}, 2, v{bp}')
    k(f'v_and_b32 v{sel}, 3, v{t0}')
    k('s_mov_b32 s42, 0xffff0000')
    k(f's_mov_b32 s43, {f32hex(1.0/512)}')
    k(f's_mov_b32 s52, {f32hex(1e-5)}')
    for c in range(2):
        q=ssq[c]
        k(f'v_cmp_eq_u32 vcc, 1, v{sel}')
        k(f'v_cndmask_b32 v{q}, v{q}, v{q+1}, vcc')
        k(f'v_cmp_eq_u32 vcc, 2, v{sel}')
        k(f'v_cndmask_b32 v{q}, v{q}, v{q+2}, vcc')
        k(f'v_cmp_eq_u32 vcc, 3, v{sel}')
        k(f'v_cndmask_b32 v{q}, v{q}, v{q+3}, vcc')
        k(f'ds_bpermute_b32 v{q+1}, v{bp}, v{q}')
    k('s_waitcnt lgkmcnt(0)')
    def rb(dst,src):
        k(f'v_cvt_pk_bf16_f32 v{dst}, v{src}, v{src}')
        k(f'v_and_b32 v{dst}, s42, v{dst}')
    for c in range(2):
        m=ssum[c]; q=ssq[c]+1
        k(f'v_mul_f32 v{m}, s43, v{m}')
        k(f'v_mul_f32 v{q}, s43, v{q}')
        k(f'v_fma_f32 v{q}, -v{m}, v{m}, v{q}')
        k(f'v_max_f32 v{q}, 0, v{q}')
        rb(q,q)
        k(f'v_add_f32 v{q}, s52, v{q}')
        rb(q,q)
        k(f'v_sqrt_f32 v{q}, v{q}')
        rb(q,q)
        k(f'v_rcp_f32 v{rstd[c]}, v{q}')
        rb(m,m)
        k(f'v_mul_f32 v{nmr[c]}, v{m}, v{rstd[c]}')
        k(f'v_sub_f32 v{nmr[c]}, 0, v{nmr[c]}')
    c0=math.sqrt(2/math.pi)
    k1c=-2*c0*LOG2E; k3c=k1c*0.044715
    kc1=k.v.alloc(2,2); one=k.v.alloc(2,2)
    k(f's_mov_b32 s54, {f32hex(k3c)}'); k(f's_mov_b32 s55, {f32hex(k3c)}')
    k(f'v_mov_b32 v{kc1}, {f32hex(k1c)}'); k(f'v_mov_b32 v{kc1+1}, {f32hex(k1c)}')
    k(f'v_mov_b32 v{one}, 1.0'); k(f'v_mov_b32 v{one+1}, 1.0')
    so=k.v.alloc()
    k(f'v_lshlrev_b32 v{so}, 4, v{lane}')
    k('s_lshl_b32 s56, s21, 1'); k('s_lshr_b32 s57, s20, 1'); k('s_add_u32 s56, s56, s57')
    k(f's_mul_i32 s56, s56, {56*4096}')
    k('s_and_b32 s57, s20, 1'); k('s_lshl_b32 s57, s57, 11'); k('s_add_u32 s56, s56, s57')
    k('s_mul_i32 s58, s22, 7')
    k('s_add_u32 s59, s58, s23'); k('s_lshr_b32 s59, s59, 1'); k('s_lshl_b32 s59, s59, 12'); k('s_add_u32 s59, s59, s56')
    k('s_mul_i32 s60, s23, 7'); k('s_sub_u32 s60, 6, s60'); k('s_add_u32 s60, s60, s58'); k('s_lshr_b32 s60, s60, 1')
    k('s_lshl_b32 s60, s60, 12'); k('s_add_u32 s60, s60, s56'); k('s_lshl_b32 s61, s23, 3'); k('s_add_u32 s60, s60, s61')
    k('s_waitcnt vmcnt(0)')
    pool=[fW[0][j] for j in range(7)]+[fW[1][j] for j in range(7)]
    outp=[fH[0][0],fH[0][1],fH[1][0],fH[1][1]]
    def gelu_tile(a,csr,b1r,c,tmp,dst):
        X=tmp[0]; E=tmp[1]; seq=[]
        P=lambda r,h: V(r+2*h,2)
        st=[[] for _ in range(9)]
        for h in range(2):
            st[0].append(f'v_pk_fma_f32 {P(X,h)}, {P(csr,h)}, {V(nmr[c],2)}, {P(b1r,h)} op_sel_hi:[1,0,1]')
            st[1].append(f'v_pk_fma_f32 {P(X,h)}, {P(a,h)}, {V(rstd[c],2)}, {P(X,h)} op_sel_hi:[1,0,1]')
            st[2].append(f'v_pk_mul_f32 {P(E,h)}, {P(X,h)}, {P(X,h)}')
            st[3].append(f'v_pk_fma_f32 {P(E,h)}, {P(E,h)}, s[54:55], {V(kc1,2)}')
            st[4].append(f'v_pk_mul_f32 {P(E,h)}, {P(E,h)}, {P(X,h)}')
            st[5]+= [f'v_exp_f32 v{E+2*h}, v{E+2*h}', f'v_exp_f32 v{E+2*h+1}, v{E+2*h+1}']
            st[6].append(f'v_pk_add_f32 {P(E,h)}, {P(E,h)}, {V(one,2)}')
            st[7]+= [f'v_rcp_f32 v{E+2*h}, v{E+2*h}', f'v_rcp_f32 v{E+2*h+1}, v{E+2*h+1}']
            st[8].append(f'v_pk_mul_f32 {P(X,h)}, {P(X,h)}, {P(E,h)}')
        fin=[f'v_cvt_pk_bf16_f32 v{dst+h}, v{X+2*h}, v{X+2*h+1}' for h in range(2)]
        return st,fin
    oi=0
    for c in range(2):
        for q in range(3):
            o=outp[oi%4]; oi+=1
            sa,fa=gelu_tile(acc[2*q][c],cs[2*q],b1[2*q],c,(pool[0],pool[1]),o)
            sb,fb=gelu_tile(acc[2*q+1][c],cs[2*q+1],b1[2*q+1],c,(pool[2],pool[3]),o+2)
            for x,y in zip(sa,sb):
                for l in x+y: k(l)
            for l in fa+fb: k(l)
            k(f's_add_u32 s62, s59, {q*4096+c*1024}')
            k(f'buffer_store_dwordx4 {V(o,4)}, v{so}, s[32:35], s62 offen {store_flags}')
    o=outp[oi%4]
    sa,fa=gelu_tile(acc[6][0],cs[6],b1[6],0,(pool[0],pool[1]),o)
    sb,fb=gelu_tile(acc[6][1],cs[6],b1[6],1,(pool[2],pool[3]),o+2)
    for x,y in zip(sa,sb):
        for l in x+y: k(l)
    for l in fa+fb: k(l)
    k(f'buffer_store_dwordx2 {V(o,2)}, v{so}, s[32:35], s60 offen {store_flags}')
    k(f'buffer_store_dwordx2 {V(o+2,2)}, v{so}, s[32:35], s60 offen offset:1024 {store_flags}')
    k.label(lx); k('s_endpgm')
    return k, dict(name=name,grid=256,block=256,lds=5*SLOT,vgpr=k.v.maxused+1,sgpr=70)
```

```python
from kb import *
from k1 import *
NS=8; P=5; NR=6
RING=NS*4096; RES=4*RING
def build_k4(name='k4_ffn2_kernel'):
    k=KB(name)
    k('.text'); k(f'.globl {name}'); k('.p2align 8'); k(f'.type {name},@function'); k.label(name)
    lx=k.lab('exit')
    k('s_cmp_ge_u32 s2, 256'); k(f's_cbranch_scc1 {lx}')
    k('s_load_dwordx4 s[4:7], s[0:1], 80')
    k('s_load_dwordx2 s[8:9], s[0:1], 96')
    k('s_load_dwordx2 s[10:11], s[0:1], 112')
    lane=k.v.alloc(); wv=k.v.alloc(); t0=k.v.alloc(); t1=k.v.alloc(); t2=k.v.alloc(); t3=k.v.alloc()
    k(f'v_and_b32 v{lane}, 63, v0')
    k(f'v_lshrrev_b32 v{wv}, 6, v0')
    k('s_and_b32 s21, s2, 7'); k('s_lshr_b32 s22, s2, 3')
    k('s_lshr_b32 s23, s22, 3'); k('s_lshl_b32 s21, s21, 2'); k('s_add_u32 s21, s21, s23')
    k('s_and_b32 s22, s22, 7')
    k(f'v_readfirstlane_b32 s20, v{wv}')
    vl=k.v.alloc(); vw=k.v.alloc(); vr=k.v.alloc(); vb=k.v.alloc()
    k(f'v_lshlrev_b32 v{vl}, 4, v{lane}')
    k(f'v_lshrrev_b32 v{t0}, 3, v{lane}')
    k(f'v_lshlrev_b32 v{vw}, 10, v{t0}')
    k(f'v_bfe_u32 v{t1}, v{lane}, 1, 2')
    k(f'v_bfe_u32 v{t2}, v{lane}, 4, 2')
    k(f'v_xor_b32 v{t1}, v{t1}, v{t2}')
    k(f'v_lshl_add_u32 v{vw}, v{t1}, 5, v{vw}')
    k(f'v_and_b32 v{t1}, 1, v{lane}')
    k(f'v_lshl_add_u32 v{vw}, v{t1}, 4, v{vw}')
    k(f'v_lshrrev_b32 v{t0}, 1, v{lane}')
    k(f'v_lshlrev_b32 v{vr}, 8, v{t0}')
    k(f'v_lshl_add_u32 v{vr}, v{t1}, 4, v{vr}')
    k(f'v_lshrrev_b32 v{t0}, 4, v{lane}')
    k(f'v_lshlrev_b32 v{vb}, 3, v{t0}')
    k('s_waitcnt lgkmcnt(0)')
    srd(k,12,4,0,F*D*2)
    srd(k,16,6,0,D*2)
    srd(k,24,8,0,L*D*2)
    srd(k,28,10,WS_H1,L*F*2)
    srd(k,32,10,WS_HB,2<<20)
    b2=[k.v.alloc(2,2) for _ in range(4)]
    k('s_lshl_b32 s36, s22, 7')
    for j in range(4):
        k(f'buffer_load_dwordx2 {V(b2[j],2)}, v{vb}, s[16:19], s36 offen offset:{32*j}')
    k('s_lshr_b32 s37, s21, 1'); k('s_lshl_b32 s37, s37, 17')
    k('s_lshl_b32 s38, s22, 14'); k('s_add_u32 s37, s37, s38')
    k('s_and_b32 s38, s21, 1'); k('s_lshl_b32 s38, s38, 7'); k('s_add_u32 s37, s37, s38')
    k('s_lshl_b32 s38, s20, 5'); k('s_add_u32 s37, s37, s38')
    k('s_lshl_b32 s39, s20, 11'); k(f's_add_u32 s39, s39, {RES}')
    for q in range(2):
        k(f's_add_u32 m0, s39, {q*1024}')
        k(f's_add_u32 s40, s37, {q*32*256}')
        k(f'buffer_load_dwordx4 v{vr}, s[32:35], s40 offen lds')
    k(f's_mul_i32 s41, s21, {56*4096}'); k(f's_mul_i32 s42, s20, {14*4096}'); k('s_add_u32 s41, s41, s42')
    k(f's_mul_i32 s43, s20, {14*32*1024}'); k('s_add_u32 s43, s43, s36')
    k(f's_mul_i32 s44, s20, {RING}')
    fH=[[k.v.alloc(4,4) for _ in range(4)] for _ in range(NR)]
    fW=[[k.v.alloc(4,4) for _ in range(4)] for _ in range(2)]
    def issue(s):
        k(f's_add_u32 s45, s41, {s*4096}')
        for lb in range(4):
            k(f'buffer_load_dwordx4 {V(fH[s%NR][lb],4)}, v{vl}, s[28:31], s45 offen offset:{lb*1024}')
        for q in range(4):
            k(f's_add_u32 m0, s44, {(s%NS)*4096+q*1024}')
            k(f's_add_u32 s46, s43, {(s*32+q*8)*1024}')
            k(f'buffer_load_dwordx4 v{vw}, s[12:15], s46 offen lds')
    for s in range(P): issue(s)
    vW=[k.v.alloc() for _ in range(4)]
    k(f'v_lshrrev_b32 v{t0}, 2, v{lane}')
    k(f'v_lshlrev_b32 v{t1}, 7, v{t0}')
    k(f'v_and_b32 v{t2}, 3, v{lane}')
    k(f'v_lshl_add_u32 v{t1}, v{t2}, 3, v{t1}')
    k(f'v_add_u32 v{t1}, s44, v{t1}')
    k(f'v_bfe_u32 v{t2}, v{lane}, 3, 2')
    for j in range(4):
        k(f'v_xor_b32 v{t3}, {j}, v{t2}')
        k(f'v_lshl_add_u32 v{vW[j]}, v{t3}, 5, v{t1}')
    acc=[[k.v.alloc(4,4) for _ in range(4)] for _ in range(4)]
    for a in sum(acc,[]):
        for r in range(4): k(f'v_mov_b32 v{a+r}, 0')
    def reads(s):
        p=s&1; out=[]
        for j in range(4):
            for rr in range(2):
                out.append(f'ds_read_b64_tr_b16 {V(fW[p][j]+2*rr,2)}, v{vW[j]} offset:{(s%NS)*4096+rr*2048}')
        return out
    k(f's_waitcnt vmcnt({8*(P-1)})')
    for l in reads(0): k(l)
    for s in range(14):
        p=s&1
        nxt=[]
        if s<13:
            issued=min(s+P-1,13)
            k(f's_waitcnt vmcnt({8*(issued-(s+1))}) lgkmcnt(0)')
            if s+P<=13: issue(s+P)
            nxt=reads(s+1)
        else:
            k('s_waitcnt vmcnt(0) lgkmcnt(0)')
        n=0
        for j in range(4):
            for lb in range(4):
                k(f'v_mfma_f32_16x16x32_bf16 {V(acc[j][lb],4)}, {V(fW[p][j],4)}, {V(fH[s%NR][lb],4)}, {V(acc[j][lb],4)}')
                if n<len(nxt): k(nxt[n]); n+=1
    k('s_barrier')
    pa=k.v.alloc(); pr=k.v.alloc()
    k('s_lshl_b32 s45, s20, 12')
    k(f'v_add_u32 v{pa}, s45, v{vl}')
    k('s_lshl_b32 s46, s20, 14')
    k(f'v_add_u32 v{pr}, s46, v{vl}')
    labs=[k.lab(f'w{i}') for i in range(4)]; lj=k.lab('wj')
    for w in range(4):
        k.label(labs[w])
        if w<3:
            k(f's_cmp_eq_u32 s20, {w}'); k(f's_cbranch_scc0 {labs[w+1]}')
        for v in range(4):
            if v==w: continue
            for j in range(4):
                k(f'ds_write_b128 v{pa}, {V(acc[j][v],4)} offset:{v*16384+j*1024}')
        if w!=0:
            for j in range(4):
                for r in range(4): k(f'v_mov_b32 v{acc[j][0]+r}, v{acc[j][w]+r}')
        if w<3: k(f's_branch {lj}')
    k.label(lj)
    k('s_waitcnt lgkmcnt(0)')
    k('s_barrier')
    tmp=[[fH[i][j] for j in range(4)] for i in range(3)]
    ra=[k.v.alloc() for _ in range(3)]
    for i in range(3):
        k(f's_add_u32 s45, s20, {i+1}'); k('s_and_b32 s45, s45, 3'); k('s_lshl_b32 s45, s45, 12')
        k(f'v_add_u32 v{ra[i]}, s45, v{pr}')
        for j in range(4):
            k(f'ds_read_b128 {V(tmp[i][j],4)}, v{ra[i]} offset:{j*1024}')
    res=[fH[3][0]+2*j for j in range(4)]
    rr_=k.v.alloc()
    k(f'v_lshlrev_b32 v{rr_}, 3, v{lane}')
    k(f'v_add_u32 v{rr_}, s39, v{rr_}')
    for j in range(4):
        k(f'ds_read_b64_tr_b16 {V(res[j],2)}, v{rr_} offset:{j*512}')
    so=k.v.alloc()
    k(f'v_and_b32 v{t0}, 15, v{lane}')
    k(f'v_lshlrev_b32 v{so}, 10, v{t0}')
    k(f'v_add_u32 v{so}, v{so}, v{vb}')
    k('s_lshl_b32 s47, s21, 16'); k('s_lshl_b32 s48, s20, 14'); k('s_add_u32 s47, s47, s48'); k('s_add_u32 s47, s47, s36')
    k('s_mov_b32 s42, 0xffff0000')
    k('s_waitcnt lgkmcnt(0)')
    T=[fH[4][0]+i for i in range(4)]; O=[fH[4][1],fH[4][1]+2,fH[4][2],fH[4][2]+2]
    for j in range(4):
        a=acc[j][0]
        for i in range(3):
            for r in range(4): k(f'v_add_f32 v{a+r}, v{a+r}, v{tmp[i][j]+r}')
        for h in range(2):
            y0=a+2*h; y1=y0+1
            k(f'v_cvt_pk_bf16_f32 v{T[0]}, v{y0}, v{y1}')
            k(f'v_lshlrev_b32 v{y0}, 16, v{T[0]}')
            k(f'v_and_b32 v{y1}, s42, v{T[0]}')
            k(f'v_lshlrev_b32 v{T[1]}, 16, v{b2[j]+h}')
            k(f'v_and_b32 v{T[2]}, s42, v{b2[j]+h}')
            k(f'v_add_f32 v{y0}, v{y0}, v{T[1]}')
            k(f'v_add_f32 v{y1}, v{y1}, v{T[2]}')
            k(f'v_cvt_pk_bf16_f32 v{T[0]}, v{y0}, v{y1}')
            k(f'v_lshlrev_b32 v{y0}, 16, v{T[0]}')
            k(f'v_and_b32 v{y1}, s42, v{T[0]}')
            k(f'v_lshlrev_b32 v{T[1]}, 16, v{res[j]+h}')
            k(f'v_and_b32 v{T[2]}, s42, v{res[j]+h}')
            k(f'v_add_f32 v{y0}, v{y0}, v{T[1]}')
            k(f'v_add_f32 v{y1}, v{y1}, v{T[2]}')
            k(f'v_cvt_pk_bf16_f32 v{O[j]+h}, v{y0}, v{y1}')
        k(f'buffer_store_dwordx2 {V(O[j],2)}, v{so}, s[24:27], s47 offen offset:{32*j}')
    k.label(lx); k('s_endpgm')
    return k, dict(name=name,grid=256,block=256,lds=RES+8192,vgpr=k.v.maxused+1,sgpr=56)
```

```python
import sys
sys.path.insert(0,'lib')
import hazard
class Regs:
    def __init__(s, kind, lo, hi):
        s.kind=kind; s.lo=lo; s.hi=hi; s.next=lo; s.maxused=lo-1; s.names={}
    def alloc(s, n=1, align=1, name=None):
        a=(s.next+align-1)//align*align
        if a+n>s.hi: raise RuntimeError(f'out of {s.kind} regs (want {n} at {a}, limit {s.hi})')
        s.next=a+n; s.maxused=max(s.maxused,a+n-1)
        return a
    def mark(s): return s.next
    def release(s,m): s.next=m
class KB:
    def __init__(s,name,vlo=1,slo=3):
        s.name=name; s.lines=[]; s.v=Regs('v',vlo,256); s.s=Regs('s',slo,100); s.a=Regs('a',0,256); s._l=0
    def __call__(s,t=''):
        for l in str(t).split('\n'):
            l=l.rstrip()
            if l.strip()=='' : continue
            st=l.strip()
            if st.endswith(':') or st.startswith('.'): s.lines.append(st)
            else: s.lines.append('    '+st)
    def c(s,t): s.lines.append('    ; '+t)
    def lab(s,b):
        s._l+=1; return f'{s.name}_{b}{s._l}'
    def label(s,l): s.lines.append(l+':')
    def finish(s,verbose=False):
        return hazard.fix(s.lines,verbose)
def V(a,n=1): return f'v{a}' if n==1 else f'v[{a}:{a+n-1}]'
def S(a,n=1): return f's{a}' if n==1 else f's[{a}:{a+n-1}]'
def Ac(a,n=1): return f'a{a}' if n==1 else f'a[{a}:{a+n-1}]'
def desc(name,vgpr,sgpr,agpr=0):
    acc=(vgpr+3)//4*4
    if acc<4: acc=4
    nfv=acc+agpr if agpr else vgpr
    return f'''.p2align 6
.amdhsa_kernel {name}
  .amdhsa_next_free_vgpr {nfv}
  .amdhsa_next_free_sgpr {sgpr}
  .amdhsa_accum_offset {acc}
  .amdhsa_group_segment_fixed_size 0
  .amdhsa_kernarg_size 120
  .amdhsa_user_sgpr_count 2
  .amdhsa_user_sgpr_kernarg_segment_ptr 1
  .amdhsa_system_sgpr_workgroup_id_x 1
  .amdhsa_float_denorm_mode_32 3
  .amdhsa_float_denorm_mode_16_64 3
  .amdhsa_ieee_mode 0
  .amdhsa_dx10_clamp 0
.end_amdhsa_kernel
'''
```

```python
import re
REG_RE=re.compile(r'(?<![\w.])([vas])(?:\[(\d+):(\d+)\]|(\d+))(?![\w])')
TRANS=('v_exp_f32','v_log_f32','v_rcp_f32','v_rsq_f32','v_sqrt_f32','v_sin_f32','v_cos_f32','v_rcp_iflag_f32')
def regs(tok):
    out=set()
    for m in REG_RE.finditer(tok):
        k=m.group(1)
        if m.group(2) is not None:
            for i in range(int(m.group(2)),int(m.group(3))+1): out.add((k,i))
        else: out.add((k,int(m.group(4))))
    if re.search(r'\bvcc\b',tok): out.add(('s','vcc'))
    if re.search(r'\bexec\b',tok): out.add(('s','exec'))
    if re.search(r'\bm0\b',tok): out.add(('s','m0'))
    return out
class I:
    pass
def parse(line):
    s=line.split(';')[0].split('//')[0].strip()
    if not s or s.endswith(':') or s.startswith('.'): return None
    parts=s.split(None,1)
    op=parts[0]; rest=parts[1] if len(parts)>1 else ''
    ops=[o.strip() for o in re.split(r',(?![^\[]*\])',rest)] if rest else []
    i=I(); i.op=op; i.text=s; i.ops=ops
    base=re.sub(r'_(e32|e64|dpp|sdwa)$','',op); i.base=base
    i.valu=op.startswith('v_') and not op.startswith('v_mfma') and op not in('v_nop',)
    i.mfma=op.startswith('v_mfma')
    i.salu=op.startswith('s_')
    i.ds=op.startswith('ds_')
    i.vmem=op.startswith('buffer_') or op.startswith('global_') or op.startswith('flat_')
    i.trans=base in TRANS
    i.dpp=('row_' in s or 'quad_perm' in s or 'wave_' in s or op.endswith('_dpp') or 'row_bcast' in s) and i.valu
    i.permlane=base.startswith('v_permlane')
    d=set(); u=set()
    R=[regs(o) for o in ops]
    if i.mfma:
        d=R[0]; u=R[1]|R[2]|R[3]; i.srcc=R[3]; i.srcab=R[1]|R[2]
        i.passes=8 if '32x32' in op else 4
        if '32x32x2_f32' in op or '32x32x2f32' in op: i.passes=16
        if '16x16x4_f32' in op or '16x16x4f32' in op: i.passes=8
    elif i.valu:
        if base.startswith('v_cmp'):
            d=R[0]; u=set().union(*R[1:]) if len(R)>1 else set()
            if base.startswith('v_cmpx'): d=d|{('s','exec')}
        elif base in('v_readfirstlane_b32','v_readlane_b32'):
            d=R[0]; u=set().union(*R[1:])
        elif i.permlane:
            d=R[0]|R[1]; u=R[0]|R[1]
        elif base.startswith(('v_add_co','v_sub_co','v_subrev_co','v_addc_co','v_subb_co')):
            d=R[0]|R[1]; u=set().union(*R[2:])
        elif base.startswith(('v_mad_u64_u32','v_mad_i64_i32','v_div_scale')):
            d=R[0]|R[1]; u=set().union(*R[2:])
        else:
            d=R[0]; u=set().union(*R[1:]) if len(R)>1 else set()
            if base.startswith(('v_fmac','v_dot2c','v_mac','v_pk_fmac','v_writelane')) or 'op_sel' in s and base.startswith('v_cvt') or i.dpp or 'd16' in base: u=u|R[0]
            if base=='v_cndmask_b32' and len(ops)==3: u=u|{('s','vcc')}
    elif i.ds:
        if base.startswith(('ds_read','ds_bpermute','ds_permute','ds_swizzle')):
            d=R[0]; u=set().union(*R[1:])
            if 'd16' in base: u=u|R[0]
        else:
            u=set().union(*R)
    elif i.vmem:
        islds=bool(re.search(r'\blds\b',s)) or '_lds_' in base
        if ('load' in base) and not islds:
            d=R[0]; u=set().union(*R[1:])
            if 'd16' in base: u=u|R[0]
        elif 'atomic' in base and re.search(r'\bsc0\b',s):
            if base.startswith('global'): d=R[0]; u=set().union(*R[1:])
            else: d=R[0]; u=set().union(*R)
        else:
            u=set().union(*R)
        if islds: u=u|{('s','m0')}
        i.islds=islds
        i.widestore=None
        if 'store' in base and ('x3' in base or 'x4' in base):
            i.widestore = R[0] if base.startswith('buffer') else R[1]
    elif i.salu:
        if base in('s_nop','s_waitcnt','s_barrier','s_endpgm','s_branch','s_setprio','s_sleep') or base.startswith('s_cbranch'):
            u=set().union(*R) if R else set()
        elif base.startswith('s_cmp') or base.startswith('s_bitcmp'):
            u=set().union(*R)
        elif base.startswith(('s_load','s_buffer_load','s_memtime','s_memrealtime','s_getreg','s_getpc')):
            d=R[0]; u=set().union(*R[1:]) if len(R)>1 else set()
        else:
            d=R[0] if R else set(); u=set().union(*R[1:]) if len(R)>1 else set()
            if 'saveexec' in base: d=d|{('s','exec')}; u=u|{('s','exec')}
            if base in('s_addk_i32','s_mulk_i32'): u=u|R[0]
    i.d=d; i.u=u
    i.slots=1
    if base=='s_nop': i.slots=int(ops[0],0)+1
    return i
def isv(r): return r[0] in('v','a')
def need(p,c):
    n=0
    pv={r for r in p.d if isv(r)}; ps={r for r in p.d if r[0]=='s'}
    if p.valu:
        if c.mfma and pv&c.u: n=max(n,2)
        if c.valu:
            if p.trans and not c.trans and pv&c.u: n=max(n,1)
            if p.trans and c.trans and pv&c.u: n=max(n,1)
            if c.dpp and pv&c.u: n=max(n,2)
            if c.permlane and pv&c.u: n=max(n,2)
            if c.base in('v_readfirstlane_b32','v_readlane_b32') and pv&c.u: n=max(n,1)
            if ps&c.u: n=max(n,2)
            if c.base in('v_readlane_b32','v_writelane_b32') and ps&c.u: n=max(n,4)
            if ('op_sel' in p.text or 'sdwa' in p.text or 'dst_sel' in p.text) and pv&(c.u|c.d): n=max(n,1)
            if ('s','exec') in ps: n=max(n,4)
        if c.mfma and ('s','exec') in ps: n=max(n,4)
        if p.trans and (c.vmem or c.ds or c.mfma) and pv&c.u: n=max(n,2 if c.mfma else 1)
        if c.vmem and ps&c.u: n=max(n,5)
        if c.salu and ps&c.u and not c.base.startswith('s_cbranch'): n=max(n,3)
    if p.mfma:
        P=p.passes
        if c.mfma:
            if p.d&c.srcc:
                if p.d==c.srcc and c.passes==P: n=max(n,0)
                else: n=max(n,{2:4,4:6,8:10,16:18}[P])
            if p.d&c.srcab: n=max(n,{2:5,4:8,8:12,16:20}[P])
            if p.d&c.d and not (p.d&c.srcc): n=max(n,{2:5,4:8,8:12,16:20}[P])
        elif c.valu or c.vmem or c.ds:
            if p.d&(c.u|c.d): n=max(n,{2:5,4:8,8:12,16:20}[P])
            if c.valu and p.srcc&c.d: n=max(n,{2:1,4:3,8:7,16:15}[P])
            if (c.ds or c.vmem) and p.srcc&c.d: n=max(n,{2:1,4:3,8:7,16:15}[P])
    if p.salu and ('s','m0') in p.d and c.vmem and getattr(c,'islds',False): n=max(n,1)
    if p.vmem and getattr(p,'widestore',None):
        if c.valu and p.widestore&c.d: n=max(n,2)
        elif (c.mfma or c.ds or c.vmem) and p.widestore&c.d: n=max(n,1)
    return n
MAXW=20
def fix(lines, verbose=False):
    out=[]; hist=[]
    labels={}
    nins=0
    parsed=[parse(l) for l in lines]
    for l,p in zip(lines,parsed):
        if p is None:
            out.append((l,None)); continue
        req=0; dist=0
        for q in reversed(hist):
            if dist>=MAXW: break
            k=need(q,p)
            if k>dist: req=max(req,k-dist)
            dist+=q.slots
        while req>0:
            k=min(req,16); nop=parse(f's_nop {k-1}'); out.append((f'    s_nop {k-1}',nop)); hist.append(nop); req-=k; nins+=1
        out.append((l,p)); hist.append(p)
        if p.base in('s_endpgm',): hist=[]
        if p.base=='s_branch': hist=[]
    idx={}
    for n,(l,p) in enumerate(out):
        s=l.strip()
        if p is None and s.endswith(':'): idx[s[:-1]]=n
    fixes=[]
    for n,(l,p) in enumerate(out):
        if p is not None and (p.base=='s_branch' or p.base.startswith('s_cbranch')):
            tgt=p.ops[0]
            if tgt not in idx: continue
            h=[q for (_,q) in out[max(0,n-60):n+1] if q is not None]
            dist0=0; seq=[]
            for (_,q) in out[idx[tgt]:idx[tgt]+60]:
                if q is None: continue
                req=0; dist=dist0
                for r in reversed(h):
                    if dist>=MAXW: break
                    k=need(r,q)
                    if k>dist: req=max(req,k-dist)
                    dist+=r.slots
                if req>0: fixes.append((n,req,l.strip(),q.text))
                dist0+=q.slots
                if dist0>=MAXW or q.base in('s_branch','s_endpgm'): break
    byn={}
    for n,req,a,b in fixes: byn[n]=max(byn.get(n,0),req)
    res=[]
    for n,(l,p) in enumerate(out):
        if n in byn:
            r=byn[n]
            while r>0:
                k=min(r,16); res.append(f'    s_nop {k-1}'); r-=k; nins+=1
        res.append(l)
    if verbose: print('hazard: inserted',nins,'nops')
    return res
```

```python
import sys, importlib
from kb import *
import k1,k2,k3,k4
HEADER=open('sequential_preLN__ssm_conv_s4d__dense_activation_gelu__prompt.s.ref').read().split('; Override launch geometry')[0]
def build(kernels, extra_launch=None):
    out=[HEADER.rstrip()]
    launches=[(info['name'],info['grid'],info['block'],info['lds']) for k,info in kernels]
    if extra_launch: launches=extra_launch(launches)
    for (n,g,b,l) in launches:
        out.append(f'; @launch kernel={n} grid=({g},1,1) block=({b},1,1) lds={l}')
    out.append('.amdgcn_target "amdgcn-amd-amdhsa--gfx950"')
    seen=set()
    for k,info in kernels:
        if info['name'] in seen: continue
        seen.add(info['name'])
        out+=k.finish()
    out.append('.section .rodata,"a"')
    seen=set()
    for k,info in kernels:
        if info['name'] in seen: continue
        seen.add(info['name'])
        out.append(desc(info['name'],info['vgpr'],info['sgpr'],info.get('agpr',0)))
    return '\n'.join(out)+'\n'
if __name__=='__main__':
    import kb
    if len(sys.argv)>2 and sys.argv[2]=='stamp': kb.STAMP_ON[0]=True
    ks=[k1.build_k1(),k2.build_k2(),k3.build_k3(),k4.build_k4()]
    for k,i in ks: print(i)
    s=build(ks)
    path=sys.argv[1] if len(sys.argv)>1 else 'sequential_preLN__ssm_conv_s4d__dense_activation_gelu__prompt.s'
    open(path,'w').write(s); print('wrote',path,len(s),'bytes')
```

```python
import build, k1,k2,k3,k4
from kb import *
def nopk():
    k=KB('k0_nop_kernel'); n='k0_nop_kernel'
    k('.text'); k(f'.globl {n}'); k('.p2align 8'); k(f'.type {n},@function'); k.label(n); k('s_endpgm')
    return k, dict(name=n,grid=256,block=256,lds=0,vgpr=4,sgpr=16)
def mk(path, f):
    ks=[k1.build_k1(),k2.build_k2(),k3.build_k3(),k4.build_k4(),nopk()]
    s=build.build(ks, extra_launch=f)
    open(path,'w').write(s)
nop=('k0_nop_kernel',256,256,0)
mk('vA.s', lambda L: L[:4])
mk('vB.s', lambda L: L[:4]+[nop]*4)
mk('vC.s', lambda L: [nop]*4+L[:4])
mk('vD.s', lambda L: L[:1]+L[:4])
mk('vE.s', lambda L: L[:4]+L[3:4])
mk('vF.s', lambda L: L[:3]+L[2:4])
```

```python
from kb import *
import struct, math
WS_XG=0
WS_LG=2<<20
WS_KR=4<<20
KLD=4160
WS_HB=8<<20
WS_H1=10<<20
WS_CS=18<<20
WS_W2F=19<<20
WS_SYNC=21<<20
L=2048; D=512; F=1792; N=128
LOG2E=1.4426950408889634
def f32hex(x): return '0x%08x'%struct.unpack('<I',struct.pack('<f',x))[0]
def f32split(x):
    hi=struct.unpack('<f',struct.pack('<f',x))[0]
    return hi,x-hi
def srd(k,sreg,base_s,off,size):
    if off:
        k(f's_add_u32 s{sreg}, s{base_s}, {hex(off)}')
        k(f's_addc_u32 s{sreg+1}, s{base_s+1}, 0')
    else:
        k(f's_mov_b32 s{sreg}, s{base_s}')
        k(f's_mov_b32 s{sreg+1}, s{base_s+1}')
    k(f's_mov_b32 s{sreg+2}, {hex(size)}')
    k(f's_mov_b32 s{sreg+3}, 0x00020000')
def reduce64_pair(k, a, b, sa, sb):
    for r in (8,4,2,1):
        k(f'v_add_f32_dpp v{a}, v{a}, v{a} row_ror:{r} row_mask:0xf bank_mask:0xf')
        k(f'v_add_f32_dpp v{b}, v{b}, v{b} row_ror:{r} row_mask:0xf bank_mask:0xf')
    k(f'v_add_f32_dpp v{a}, v{a}, v{a} row_bcast:15 row_mask:0xa bank_mask:0xf')
    k(f'v_add_f32_dpp v{b}, v{b}, v{b} row_bcast:15 row_mask:0xa bank_mask:0xf')
    k(f'v_add_f32_dpp v{a}, v{a}, v{a} row_bcast:31 row_mask:0xc bank_mask:0xf')
    k(f'v_add_f32_dpp v{b}, v{b}, v{b} row_bcast:31 row_mask:0xc bank_mask:0xf')
    k(f'v_readlane_b32 s{sa}, v{a}, 63')
    k(f'v_readlane_b32 s{sb}, v{b}, 63')
def rne_bf16_int(j):
    u=struct.unpack('<I',struct.pack('<f',float(j)))[0]
    u=(u+0x7FFF+((u>>16)&1))&0xFFFF0000
    return int(struct.unpack('<f',struct.pack('<I',u))[0])
def gather_table():
    t=[]
    for x in range(2048):
        p=rne_bf16_int(2047-x)
        t.append((p&~1)+2112*(p&1))
    return t
class VM:
    def __init__(s,k): s.k=k; s.ops=[]
    def issue(s,text,tag=None):
        s.k(text); s.ops.append(tag)
    def wait(s,tag,extra=''):
        idx=max(i for i,t in enumerate(s.ops) if t==tag)
        n=len(s.ops)-1-idx
        assert n<=63,(tag,n)
        s.k(f's_waitcnt vmcnt({n}){" "+extra if extra else ""}')
    def wait_all(s,extra=''):
        s.k(f's_waitcnt vmcnt(0){" "+extra if extra else ""}')
```

```python
from common import *
import k1 as K1old
RSK=544
CH_LDS=(37+32)*RSK
N_KG=512; N_LN=256; N_W2=224; N_CS=28
B_LN=N_KG; B_W2=B_LN+N_LN; B_CS=B_W2+N_W2; B_END=B_CS+N_CS

def role_kgen(k, tabl):
    k.c('======== S4D kernel generation: one channel per workgroup ========')
    k('s_load_dwordx4 s[4:7], s[0:1], 8')
    k('s_load_dwordx4 s[8:11], s[0:1], 24')
    k('s_load_dwordx2 s[12:13], s[0:1], 40')
    k('s_load_dwordx2 s[14:15], s[0:1], 112')
    lane=k.v.alloc(); wv=k.v.alloc(); t0=k.v.alloc(); t1=k.v.alloc(); t2=k.v.alloc()
    k(f'v_and_b32 v{lane}, 63, v0')
    k(f'v_lshrrev_b32 v{wv}, 6, v0')
    k('s_getpc_b64 s[16:17]')
    lp=k.lab('pc'); k.label(lp)
    k(f's_add_u32 s16, s16, {tabl}-{lp}')
    k('s_addc_u32 s17, s17, 0')
    k(f'v_readfirstlane_b32 s20, v{wv}')
    tb=k.v.alloc(4,4); so=k.v.alloc()
    k(f'v_lshlrev_b32 v{so}, 4, v0')
    k(f'global_load_dwordx4 {V(tb,4)}, v{so}, s[16:17]')
    k('s_and_b32 s23, s20, 1')
    k('s_lshr_b32 s22, s20, 1')
    k('s_lshl_b32 s25, s2, 8')
    k('s_lshl_b32 s26, s23, 7')
    k('s_add_u32 s25, s25, s26')
    voff=k.v.alloc(); vdt=k.v.alloc()
    k(f'v_lshlrev_b32 v{voff}, 1, v{lane}')
    k('s_lshl_b32 s27, s2, 1')
    k(f'v_mov_b32 v{vdt}, s27')
    k('s_waitcnt lgkmcnt(0)')
    for i,(b) in enumerate((4,6,8,10)):
        srd(k,32+4*i,b,0,D*N*2)
    srd(k,52,12,0,D*2)
    p=[k.v.alloc() for _ in range(4)]; dt=k.v.alloc()
    k(f'buffer_load_ushort v{dt}, v{vdt}, s[52:55], 0 offen')
    for i in range(4):
        k(f'buffer_load_ushort v{p[i]}, v{voff}, s[{32+4*i}:{35+4*i}], s25 offen')
    srd(k,48,14,WS_KR,D*KLD+64)
    Lhi,Llo=f32split(LOG2E)
    k(f's_mov_b32 s56, {f32hex(Lhi)}')
    k(f's_mov_b32 s57, {f32hex(Llo)}')
    k(f's_mov_b32 s58, {f32hex(0.6931471805599453)}')
    k('s_mov_b32 s30, 0xffff0000')
    k(f's_mov_b32 s59, {f32hex(0.15915494309189535)}')
    def exp_rb(dst,src,ta,tb_):
        k(f'v_mul_f32 v{ta}, s56, v{src}')
        k(f'v_fma_f32 v{tb_}, v{src}, s56, -v{ta}')
        k(f'v_fmac_f32 v{tb_}, s57, v{src}')
        k(f'v_exp_f32 v{ta}, v{ta}')
        k(f'v_mul_f32 v{tb_}, s58, v{tb_}')
        k(f'v_fma_f32 v{ta}, v{ta}, v{tb_}, v{ta}')
        k(f'v_cvt_pk_bf16_f32 v{dst}, v{ta}, v{ta}')
        k(f'v_and_b32 v{dst}, s30, v{dst}')
    wa=k.v.alloc()
    k('s_lshl_b32 s60, s23, 8')
    k(f'v_lshlrev_b32 v{wa}, 2, v{lane}')
    k(f'v_add_u32 v{wa}, s60, v{wa}')
    k.stamp(1)
    k('s_waitcnt vmcnt(0)')
    k.stamp(2)
    k(f'v_lshlrev_b32 v{dt}, 16, v{dt}')
    for i in range(2): k(f'v_lshlrev_b32 v{p[i]}, 16, v{p[i]}')
    zr,zi,cr,ci=p
    t3=k.v.alloc(); t4=k.v.alloc()
    k(f'v_mul_f32 v{t0}, s56, v{dt}')
    k(f'v_mul_f32 v{t3}, s56, v{zr}')
    k(f'v_fma_f32 v{t1}, v{dt}, s56, -v{t0}')
    k(f'v_fma_f32 v{t4}, v{zr}, s56, -v{t3}')
    k(f'v_fmac_f32 v{t1}, s57, v{dt}')
    k(f'v_fmac_f32 v{t4}, s57, v{zr}')
    k(f'v_exp_f32 v{t0}, v{t0}')
    k(f'v_exp_f32 v{t3}, v{t3}')
    k(f'v_mul_f32 v{t1}, s58, v{t1}')
    k(f'v_mul_f32 v{t4}, s58, v{t4}')
    k(f'v_fma_f32 v{t0}, v{t0}, v{t1}, v{t0}')
    k(f'v_fma_f32 v{t3}, v{t3}, v{t4}, v{t3}')
    k(f'v_cvt_pk_bf16_f32 v{dt}, v{t0}, v{t3}')
    k(f'v_and_b32 v{zr}, s30, v{dt}')
    k(f'v_lshlrev_b32 v{dt}, 16, v{dt}')
    k(f'v_mul_f32 v{zr}, v{zr}, v{dt}')
    k(f'v_mul_f32 v{zi}, v{zi}, v{dt}')
    k(f'v_mul_f32 v{zr}, s56, v{zr}')
    k(f'v_mul_f32 v{zi}, s59, v{zi}')
    def cexp(mult):
        r=k.v.alloc(2,2)
        k(f's_mov_b32 s61, {f32hex(float(-mult))}')
        k(f's_mov_b32 s62, {f32hex(float(mult))}')
        k(f'v_mul_f32 v{t0}, s61, v{zr}')
        k(f'v_mul_f32 v{t1}, s62, v{zi}')
        k(f'v_exp_f32 v{t0}, v{t0}')
        k(f'v_fract_f32 v{t1}, v{t1}')
        k(f'v_cos_f32 v{r}, v{t1}')
        k(f'v_sin_f32 v{r+1}, v{t1}')
        k(f'v_mul_f32 v{r}, v{r}, v{t0}')
        k(f'v_mul_f32 v{r+1}, v{r+1}, v{t0}')
        n=k.v.alloc(2,2)
        k(f'v_sub_f32 v{n}, 0, v{r+1}')
        k(f'v_mov_b32 v{n+1}, v{r}')
        return r,n
    def cmul(d,x,w):
        k(f'v_pk_mul_f32 {V(d,2)}, {V(w[0],2)}, {V(x,2)} op_sel:[0,0] op_sel_hi:[1,0]')
        k(f'v_pk_fma_f32 {V(d,2)}, {V(w[1],2)}, {V(x,2)}, {V(d,2)} op_sel:[0,1,0] op_sel_hi:[1,1,1]')
    x=[k.v.alloc(2,2),k.v.alloc(2,2)]; od=k.v.alloc(2,2)
    pk=[k.v.alloc() for _ in range(4)]
    npk=[0]
    def put(row,r,neg):
        q=pk[npk[0]%4]; npk[0]+=1
        k(f'v_cvt_pk_bf16_f32 v{q}, v{r}, {"-" if neg else ""}v{r+1}')
        k(f'ds_write_b32 v{wa}, v{q} offset:{row*RSK}')
    lB=k.lab('bch'); lJ=k.lab('chj')
    k('s_cmp_eq_u32 s22, 0'); k(f's_cbranch_scc0 {lB}')
    m=k.v.mark()
    for i in (2,3): k(f'v_lshlrev_b32 v{p[i]}, 16, v{p[i]}')
    k(f'v_mul_f32 v{cr}, v{cr}, v{dt}')
    k(f'v_mul_f32 v{ci}, v{ci}, v{dt}')
    k(f'v_add_f32 v{x[0]}, v{cr}, v{cr}')
    k(f'v_add_f32 v{x[0]+1}, v{ci}, v{ci}')
    W=cexp(64); w1=cexp(1)
    for i in range(33):
        cur=i&1; nx=cur^1
        if i<32: cmul(x[nx],x[cur],W)
        put(i,x[cur],True)
        if i<4:
            cmul(od,x[cur],w1); put(33+i,od,True)
    k(f's_branch {lJ}')
    k.v.release(m)
    k.label(lB)
    w2=cexp(2)
    k(f'v_mov_b32 v{x[0]}, 1.0'); k(f'v_mov_b32 v{x[0]+1}, 0')
    for i in range(32):
        cur=i&1; nx=cur^1
        if i<31: cmul(x[nx],x[cur],w2)
        put(37+i,x[cur],False)
    k.label(lJ)
    k('s_waitcnt lgkmcnt(0)')
    k.stamp(3)
    k('s_barrier')
    aa=k.v.alloc(); ab_=k.v.alloc(); ba=k.v.alloc()
    k(f'v_and_b32 v{t0}, 15, v{lane}')
    k(f'v_mul_u32_u24 v{aa}, {RSK}, v{t0}')
    k(f'v_lshrrev_b32 v{t1}, 4, v{lane}')
    k(f'v_lshl_add_u32 v{aa}, v{t1}, 4, v{aa}')
    k(f's_mul_i32 s60, s23, {16*RSK}')
    k(f's_add_u32 s60, s60, {37*RSK}')
    k(f'v_add_u32 v{ba}, s60, v{aa}')
    k(f's_mul_i32 s61, s22, {32*RSK}')
    k(f's_mul_i32 s62, s22, {16*RSK}'); k(f's_add_u32 s62, s62, {16*RSK}')
    k(f'v_add_u32 v{ab_}, s62, v{aa}')
    k(f'v_add_u32 v{aa}, s61, v{aa}')
    acc=[k.v.alloc(4,4) for _ in range(2)]
    for a in acc:
        for r in range(4): k(f'v_mov_b32 v{a+r}, 0')
    fa=[[k.v.alloc(4,4) for _ in range(2)] for _ in range(2)]
    fb=[k.v.alloc(4,4) for _ in range(2)]
    def ld(ks):
        s=ks&1
        k(f'ds_read_b128 {V(fb[s],4)}, v{ba} offset:{ks*64}')
        k(f'ds_read_b128 {V(fa[s][0],4)}, v{aa} offset:{ks*64}')
        k(f'ds_read_b128 {V(fa[s][1],4)}, v{ab_} offset:{ks*64}')
    ld(0)
    for ks in range(8):
        if ks<7:
            ld(ks+1); k('s_waitcnt lgkmcnt(3)')
        else: k('s_waitcnt lgkmcnt(0)')
        s=ks&1
        for mt in range(2):
            k(f'v_mfma_f32_16x16x32_bf16 {V(acc[mt],4)}, {V(fa[s][mt],4)}, {V(fb[s],4)}, {V(acc[mt],4)}')
    ta=k.v.alloc(); tb2=k.v.alloc()
    k(f'v_lshrrev_b32 v{t1}, 4, v{lane}')
    k(f'v_lshlrev_b32 v{t1}, 8, v{t1}')
    k(f'v_lshlrev_b32 v{t0}, 1, v{t0}')
    k(f's_lshl_b32 s60, s23, 5')
    k(f'v_add3_u32 v{ta}, v{t0}, v{t1}, s60')
    k(f's_lshl_b32 s61, s22, 11')
    k(f's_lshl_b32 s62, s22, 10'); k('s_add_u32 s62, s62, 1024')
    k(f'v_add_u32 v{tb2}, s62, v{ta}')
    k(f'v_add_u32 v{ta}, s61, v{ta}')
    g=[k.v.alloc() for _ in range(8)]
    for i in range(4):
        k(f'v_and_b32 v{g[2*i]}, 0xffff, v{tb+i}')
        k(f'v_lshrrev_b32 v{g[2*i+1]}, 16, v{tb+i}')
    k.stamp(4)
    k('s_barrier')
    for mt,adr in ((0,ta),(1,tb2)):
        for h in range(2):
            q=pk[(2*mt+h)%4]
            k(f'v_cvt_pk_bf16_f32 v{q}, v{acc[mt]+2*h}, v{acc[mt]+2*h+1}')
            k(f'ds_write_b16 v{adr}, v{q} offset:{(2*h)*64}')
            k(f'ds_write_b16_d16_hi v{adr}, v{q} offset:{(2*h+1)*64}')
    k('s_waitcnt lgkmcnt(0)')
    k.stamp(5)
    k('s_barrier')
    o=k.v.alloc(4,4); gl=k.v.alloc(8)
    for i in range(8):
        k(f'ds_read_u16 v{gl+i}, v{g[i]}')
    k(f's_mul_i32 s58, s2, {KLD}')
    z=k.v.alloc(4,4)
    for r in range(4): k(f'v_mov_b32 v{z+r}, 0')
    k('s_waitcnt lgkmcnt(0)')
    for i in range(4):
        k(f'v_lshl_or_b32 v{o+i}, v{gl+2*i+1}, 16, v{gl+2*i}')
    k(f'buffer_store_dwordx4 {V(o,4)}, v{so}, s[48:51], s58 offen sc1')
    k(f's_add_u32 s58, s58, 4096')
    k(f'v_cmp_gt_u32 vcc, 4, v0')
    k('s_and_saveexec_b64 s[60:61], vcc')
    lz=k.lab('kz')
    k(f's_cbranch_execz {lz}')
    k(f'buffer_store_dwordx4 {V(z,4)}, v{so}, s[48:51], s58 offen sc1')
    k.label(lz)
    k.end(0)

def role_w2(k):
    k.c('======== W2 -> MFMA fragment order ========')
    k('s_load_dwordx2 s[4:5], s[0:1], 80')
    k('s_load_dwordx2 s[6:7], s[0:1], 112')
    lane=k.v.alloc(); wv=k.v.alloc(); t0=k.v.alloc(); t1=k.v.alloc(); vo=k.v.alloc(); wa=k.v.alloc(); ra=k.v.alloc()
    k(f's_sub_u32 s21, s2, {B_W2}')
    k('s_lshr_b32 s22, s21, 2')
    k('s_and_b32 s23, s21, 3')
    k(f'v_and_b32 v{lane}, 63, v0')
    k(f'v_lshrrev_b32 v{wv}, 6, v0')
    k(f'v_lshrrev_b32 v{t0}, 4, v0')
    k(f'v_readfirstlane_b32 s20, v{wv}')
    k(f'v_and_b32 v{t1}, 15, v0')
    k(f'v_lshlrev_b32 v{vo}, 10, v{t0}')
    k(f'v_lshl_add_u32 v{vo}, v{t1}, 4, v{vo}')
    k(f'v_mul_u32_u24 v{wa}, 288, v{t0}')
    k(f'v_lshl_add_u32 v{wa}, v{t1}, 4, v{wa}')
    k('s_lshl_b32 s24, s22, 15'); k('s_lshl_b32 s25, s23, 8'); k('s_add_u32 s24, s24, s25')
    k('s_waitcnt lgkmcnt(0)')
    srd(k,8,4,0,F*D*2)
    srd(k,12,6,WS_W2F,F*D*2)
    x=[k.v.alloc(4,4),k.v.alloc(4,4)]
    k(f'buffer_load_dwordx4 {V(x[0],4)}, v{vo}, s[8:11], s24 offen')
    k('s_add_u32 s25, s24, 16384')
    k(f'buffer_load_dwordx4 {V(x[1],4)}, v{vo}, s[8:11], s25 offen')
    k(f'v_lshrrev_b32 v{t0}, 2, v{lane}')
    k(f'v_mul_u32_u24 v{ra}, 288, v{t0}')
    k(f'v_and_b32 v{t0}, 3, v{lane}')
    k(f'v_lshl_add_u32 v{ra}, v{t0}, 3, v{ra}')
    k('s_lshl_b32 s26, s20, 6')
    k(f'v_add_u32 v{ra}, s26, v{ra}')
    k('s_waitcnt vmcnt(1)')
    k(f'ds_write_b128 v{wa}, {V(x[0],4)}')
    k('s_waitcnt vmcnt(0)')
    k(f'ds_write_b128 v{wa}, {V(x[1],4)} offset:{16*288}')
    k('s_waitcnt lgkmcnt(0)')
    k('s_barrier')
    f=[k.v.alloc(4,4),k.v.alloc(4,4)]
    for jj in range(2):
        for rr in range(2):
            k(f'ds_read_b64_tr_b16 {V(f[jj]+2*rr,2)}, v{ra} offset:{jj*32+rr*16*288}')
    k('s_lshl_b32 s27, s23, 1'); k('s_lshr_b32 s28, s20, 1'); k('s_add_u32 s27, s27, s28')
    k(f's_mul_i32 s27, s27, {56*4096}')
    k('s_lshl_b32 s28, s22, 12'); k('s_add_u32 s27, s27, s28')
    k('s_and_b32 s28, s20, 1'); k('s_lshl_b32 s28, s28, 11'); k('s_add_u32 s27, s27, s28')
    k(f'v_lshlrev_b32 v{vo}, 4, v{lane}')
    for jj in range(2):
        k(f's_waitcnt lgkmcnt({2*(1-jj)})')
        k(f'buffer_store_dwordx4 {V(f[jj],4)}, v{vo}, s[12:15], s27 offen offset:{jj*1024} sc1')
    k.end(0)

def role_sync_zero(k, prefetch_label=None, prefetch_bytes=0):
    pass

def build_k0(name='k0_prep_kernel', code_label=None, code_bytes=0):
    k=KB(name)
    k('.text'); k(f'.globl {name}'); k('.p2align 8'); k(f'.type {name},@function'); k.label(name)
    ll=k.lab('ln'); lw=k.lab('w2'); lc=k.lab('cs'); lx=k.lab('exit'); tabl=f'{name}_gtab'
    k.start_stamp()
    k(f's_cmp_ge_u32 s2, {B_LN}'); k(f's_cbranch_scc1 {ll}')
    m=k.v.mark(); role_kgen(k,tabl); k.v.release(m)
    k.label(ll)
    k(f's_cmp_ge_u32 s2, {B_W2}'); k(f's_cbranch_scc1 {lw}')
    k(f's_sub_u32 s2, s2, {B_LN}')
    K1old.role_ln(k, zero_sync=True, code_label=code_label, code_bytes=code_bytes); k.v.release(m)
    k.label(lw)
    k(f's_cmp_ge_u32 s2, {B_CS}'); k(f's_cbranch_scc1 {lc}')
    role_w2(k); k.v.release(m)
    k.label(lc)
    k(f's_cmp_ge_u32 s2, {B_END}'); k(f's_cbranch_scc1 {lx}')
    k(f's_sub_u32 s2, s2, {B_CS-512}')
    K1old.role_cs(k); k.v.release(m)
    k.label(lx); k('s_endpgm')
    k('.p2align 4')
    k.lines.append(f'.type {tabl},@object')
    k.label(tabl)
    t=gather_table()
    for i in range(0,2048,16):
        k.lines.append('.short '+','.join(str(v) for v in t[i:i+16]))
    return k, dict(name=name,grid=B_END,block=256,lds=CH_LDS,vgpr=k.v.maxused+1,sgpr=72)
```

```python
from kb import *
from common import *
def role_ln(k, zero_sync=False, code_label=None, code_bytes=0):
    k.c('======== LN1 + transposes: rows 8*wg .. 8*wg+7 ========')
    k('s_load_dwordx2 s[4:5], s[0:1], 0')
    k('s_load_dwordx2 s[6:7], s[0:1], 112')
    lane=k.v.alloc(); wv=k.v.alloc(); voff=k.v.alloc()
    k(f'v_and_b32 v{lane}, 63, v0')
    k(f'v_lshrrev_b32 v{wv}, 6, v0')
    k(f'v_lshlrev_b32 v{voff}, 4, v{lane}')
    k(f'v_readfirstlane_b32 s20, v{wv}')
    k('s_lshl_b32 s21, s2, 13')
    k('s_lshl_b32 s22, s20, 11')
    k('s_add_u32 s22, s22, s21')
    k('s_waitcnt lgkmcnt(0)')
    srd(k,8,4,0,L*D*2)
    x=[k.v.alloc(4,4),k.v.alloc(4,4)]
    k(f'buffer_load_dwordx4 {V(x[0],4)}, v{voff}, s[8:11], s22 offen')
    k(f'buffer_load_dwordx4 {V(x[1],4)}, v{voff}, s[8:11], s22 offen offset:1024')
    srd(k,12,6,WS_XG,2<<20)
    srd(k,16,6,WS_LG,2<<20)
    RS=1088; LSB=8*RS
    wa=k.v.alloc()
    k(f's_mul_i32 s23, s20, {2*RS}')
    k(f'v_add_u32 v{wa}, s23, v{voff}')
    ra=k.v.alloc(); t0=k.v.alloc(); t1=k.v.alloc()
    k(f'v_bfe_u32 v{t0}, v{lane}, 2, 2')
    k(f'v_mul_u32_u24 v{ra}, {RS}, v{t0}')
    k(f'v_lshrrev_b32 v{t0}, 4, v{lane}')
    k(f'v_lshlrev_b32 v{t0}, 5, v{t0}')
    k(f'v_and_b32 v{t1}, 3, v{lane}')
    k(f'v_lshlrev_b32 v{t1}, 3, v{t1}')
    k(f'v_add3_u32 v{ra}, v{ra}, v{t0}, v{t1}')
    k(f's_lshl_b32 s24, s20, 8')
    k(f'v_add_u32 v{ra}, s24, v{ra}')
    f=[k.v.alloc(8),k.v.alloc(8)]
    sm=[k.v.alloc(),k.v.alloc()]
    k('s_mov_b32 s30, 0xffff0000')
    k.stamp(1)
    k('s_waitcnt vmcnt(0)')
    k.stamp(2)
    for r in range(2):
        for i in range(4):
            k(f'v_lshlrev_b32 v{f[r]+2*i}, 16, v{x[r]+i}')
            k(f'v_and_b32 v{f[r]+2*i+1}, s30, v{x[r]+i}')
    for r in range(2):
        k(f'ds_write_b128 v{wa}, {V(x[r],4)} offset:{r*RS}')
    for r in range(2):
        k(f'v_add_f32 v{sm[r]}, v{f[r]}, v{f[r]+1}')
    for i in range(2,8):
        for r in range(2):
            k(f'v_add_f32 v{sm[r]}, v{sm[r]}, v{f[r]+i}')
    reduce64_pair(k,sm[0],sm[1],26,27)
    mean=[k.v.alloc(),k.v.alloc()]
    k(f's_mov_b32 s31, {f32hex(1.0/512)}')
    for r in range(2):
        k(f'v_mov_b32 v{mean[r]}, s{26+r}')
    for r in range(2):
        k(f'v_mul_f32 v{mean[r]}, s31, v{mean[r]}')
    dv=[k.v.alloc(),k.v.alloc()]
    for i in range(8):
        for r in range(2):
            k(f'v_sub_f32 v{dv[r]}, v{f[r]+i}, v{mean[r]}')
            if i==0: k(f'v_mul_f32 v{sm[r]}, v{dv[r]}, v{dv[r]}')
            else: k(f'v_fmac_f32 v{sm[r]}, v{dv[r]}, v{dv[r]}')
    reduce64_pair(k,sm[0],sm[1],26,27)
    rs=[k.v.alloc(),k.v.alloc()]
    def rb(dst,src):
        k(f'v_cvt_pk_bf16_f32 v{dst}, v{src}, v{src}')
        k(f'v_and_b32 v{dst}, s30, v{dst}')
    k(f's_mov_b32 s29, {f32hex(1e-5)}')
    for r in range(2):
        k(f'v_mov_b32 v{rs[r]}, s{26+r}')
    for r in range(2):
        k(f'v_mul_f32 v{rs[r]}, s31, v{rs[r]}')
    for r in range(2): rb(rs[r],rs[r])
    for r in range(2): k(f'v_add_f32 v{rs[r]}, s29, v{rs[r]}')
    for r in range(2): rb(rs[r],rs[r])
    for r in range(2): k(f'v_sqrt_f32 v{rs[r]}, v{rs[r]}')
    for r in range(2): rb(rs[r],rs[r])
    for r in range(2): k(f'v_rcp_f32 v{rs[r]}, v{rs[r]}')
    for r in range(2): rb(mean[r],mean[r])
    ln=[k.v.alloc(4,4),k.v.alloc(4,4)]
    for i in range(4):
        for r in range(2):
            a=f[r]+2*i; b=a+1
            k(f'v_sub_f32 v{a}, v{a}, v{mean[r]}')
            k(f'v_sub_f32 v{b}, v{b}, v{mean[r]}')
            k(f'v_cvt_pk_bf16_f32 v{dv[r]}, v{a}, v{b}')
            k(f'v_lshlrev_b32 v{a}, 16, v{dv[r]}')
            k(f'v_and_b32 v{b}, s30, v{dv[r]}')
            k(f'v_mul_f32 v{a}, v{a}, v{rs[r]}')
            k(f'v_mul_f32 v{b}, v{b}, v{rs[r]}')
            k(f'v_cvt_pk_bf16_f32 v{ln[r]+i}, v{a}, v{b}')
    for r in range(2):
        k(f'ds_write_b128 v{wa}, {V(ln[r],4)} offset:{LSB+r*RS}')
    k('s_waitcnt lgkmcnt(0)')
    k.stamp(3)
    k('s_barrier')
    o=[k.v.alloc(4,4) for _ in range(4)]
    n=0
    for arr in range(2):
        for cb in range(2):
            for rr in range(2):
                k(f'ds_read_b64_tr_b16 {V(o[n]+2*rr,2)}, v{ra} offset:{arr*LSB+cb*128+rr*4*RS}')
            n+=1
    k('s_lshl_b32 s24, s20, 11')
    k('s_add_u32 s24, s24, s21')
    n=0
    for arr in range(2):
        for cb in range(2):
            k(f's_waitcnt lgkmcnt({2*(3-n)})')
            k(f'buffer_store_dwordx4 {V(o[n],4)}, v{voff}, s[{12+4*arr}:{15+4*arr}], s24 offen offset:{cb*1024} sc1')
            n+=1
    if zero_sync:
        lz0=k.lab('zs')
        k('s_or_b32 s40, s2, s20'); k('s_cmp_eq_u32 s40, 0'); k(f's_cbranch_scc0 {lz0}')
        srd(k,40,6,WS_SYNC,8192)
        zz=k.v.alloc(); za=k.v.alloc()
        k(f'v_mov_b32 v{zz}, 0'); k(f'v_lshlrev_b32 v{za}, 7, v{lane}')
        k(f'buffer_store_dword v{zz}, v{za}, s[40:43], 0 offen sc1')
        k.label(lz0)
    if code_label:
        lz1=k.lab('cp'); lp=k.lab('pc')
        npieces=(code_bytes+1023)//1024
        k('s_lshr_b32 s44, s2, 3')
        k(f's_cmp_lt_u32 s44, {npieces}'); k(f's_cbranch_scc0 {lz1}')
        k('s_cmp_eq_u32 s20, 0'); k(f's_cbranch_scc0 {lz1}')
        k('s_getpc_b64 s[46:47]'); k.label(lp)
        k(f's_add_u32 s46, s46, {code_label}-{lp}'); k('s_addc_u32 s47, s47, 0')
        k('s_lshl_b32 s44, s44, 10')
        cpv=k.v.alloc(4,4); cpa=k.v.alloc()
        k(f'v_add_u32 v{cpa}, s44, v{voff}')
        k(f's_mov_b32 s45, {code_label}_codeend-{code_label}-16')
        k(f'v_min_u32 v{cpa}, s45, v{cpa}')
        k(f'global_load_dwordx4 {V(cpv,4)}, v{cpa}, s[46:47]')
        k.label(lz1)
    k.end(0)

RSK=544
CH_LDS=(37+32)*RSK
def role_kgen(k):
    k.c('======== S4D kernel generation: channels 2*(wg-256), +1 ========')
    k('s_load_dwordx4 s[4:7], s[0:1], 8')
    k('s_load_dwordx4 s[8:11], s[0:1], 24')
    k('s_load_dwordx2 s[12:13], s[0:1], 40')
    k('s_load_dwordx2 s[14:15], s[0:1], 112')
    lane=k.v.alloc(); wv=k.v.alloc(); t0=k.v.alloc(); t1=k.v.alloc(); t2=k.v.alloc()
    k(f'v_and_b32 v{lane}, 63, v0')
    k(f'v_lshrrev_b32 v{wv}, 6, v0')
    k('s_sub_u32 s21, s2, 256')
    k(f'v_readfirstlane_b32 s20, v{wv}')
    k('s_lshr_b32 s22, s20, 1')
    k('s_and_b32 s23, s20, 1')
    k('s_lshl_b32 s24, s21, 1')
    k('s_add_u32 s24, s24, s22')
    k('s_lshl_b32 s25, s24, 8')
    k('s_lshl_b32 s26, s23, 7')
    k('s_add_u32 s25, s25, s26')
    voff=k.v.alloc()
    k(f'v_lshlrev_b32 v{voff}, 1, v{lane}')
    k('s_waitcnt lgkmcnt(0)')
    k('s_lshl_b32 s27, s21, 2')
    k('s_load_dword s28, s[12:13], s27')
    for i,(b) in enumerate((4,6,8,10)):
        srd(k,32+4*i,b,0,D*N*2)
    p=[k.v.alloc() for _ in range(4)]
    for i in range(4):
        k(f'buffer_load_ushort v{p[i]}, v{voff}, s[{32+4*i}:{35+4*i}], s25 offen')
    srd(k,48,14,WS_KR,D*KLD+64)
    g=[k.v.alloc() for _ in range(8)]
    k(f'v_lshlrev_b32 v{t0}, 3, v0')
    k(f'v_sub_u32 v{t0}, 2047, v{t0}')
    for i in range(8):
        k(f'v_subrev_u32 v{t1}, {i}, v{t0}')
        k(f'v_cvt_f32_u32 v{t1}, v{t1}')
        k(f'v_cvt_pk_bf16_f32 v{t1}, v{t1}, v{t1}')
        k(f'v_lshlrev_b32 v{t1}, 16, v{t1}')
        k(f'v_cvt_u32_f32 v{t1}, v{t1}')
        k(f'v_and_b32 v{t2}, 1, v{t1}')
        k(f'v_mul_u32_u24 v{t2}, 2111, v{t2}')
        k(f'v_add_u32 v{g[i]}, v{t1}, v{t2}')
    Lhi,Llo=f32split(LOG2E)
    k(f's_mov_b32 s52, {f32hex(Lhi)}')
    k(f's_mov_b32 s53, {f32hex(Llo)}')
    k(f's_mov_b32 s54, {f32hex(0.6931471805599453)}')
    k('s_mov_b32 s30, 0xffff0000')
    def exp_rb(dst,src,ta,tb):
        k(f'v_mul_f32 v{ta}, s52, v{src}')
        k(f'v_fma_f32 v{tb}, v{src}, s52, -v{ta}')
        k(f'v_fmac_f32 v{tb}, s53, v{src}')
        k(f'v_exp_f32 v{ta}, v{ta}')
        k(f'v_mul_f32 v{tb}, s54, v{tb}')
        k(f'v_fma_f32 v{ta}, v{ta}, v{tb}, v{ta}')
        k(f'v_cvt_pk_bf16_f32 v{dst}, v{ta}, v{ta}')
        k(f'v_and_b32 v{dst}, s30, v{dst}')
    dt=k.v.alloc()
    k('s_waitcnt lgkmcnt(0)')
    k('s_lshl_b32 s29, s22, 4')
    k('s_lshr_b32 s28, s28, s29')
    k('s_lshl_b32 s28, s28, 16')
    k(f'v_mov_b32 v{dt}, s28')
    exp_rb(dt,dt,t0,t1)
    k.stamp(1)
    k('s_waitcnt vmcnt(0)')
    k.stamp(2)
    for i in range(4): k(f'v_lshlrev_b32 v{p[i]}, 16, v{p[i]}')
    zr,zi,cr,ci=p
    exp_rb(zr,zr,t0,t1)
    k(f'v_mul_f32 v{zr}, v{zr}, v{dt}')
    k(f'v_sub_f32 v{zr}, 0, v{zr}')
    k(f'v_mul_f32 v{zi}, v{zi}, v{dt}')
    k(f'v_mul_f32 v{cr}, v{cr}, v{dt}')
    k(f'v_mul_f32 v{ci}, v{ci}, v{dt}')
    k(f'v_add_f32 v{cr}, v{cr}, v{cr}')
    k(f'v_add_f32 v{ci}, v{ci}, v{ci}')
    k(f'v_mul_f32 v{zr}, s52, v{zr}')
    k(f's_mov_b32 s55, {f32hex(0.15915494309189535)}')
    k(f'v_mul_f32 v{zi}, s55, v{zi}')
    def cexp(mult):
        r=k.v.alloc(); i=k.v.alloc()
        k(f's_mov_b32 s56, {f32hex(float(mult))}')
        k(f'v_mul_f32 v{t0}, s56, v{zr}')
        k(f'v_mul_f32 v{t1}, s56, v{zi}')
        k(f'v_exp_f32 v{t0}, v{t0}')
        k(f'v_fract_f32 v{t1}, v{t1}')
        k(f'v_cos_f32 v{r}, v{t1}')
        k(f'v_sin_f32 v{i}, v{t1}')
        k(f'v_mul_f32 v{r}, v{r}, v{t0}')
        k(f'v_mul_f32 v{i}, v{i}, v{t0}')
        return r,i
    w1=cexp(1); w2=cexp(2); W=cexp(64)
    wa=k.v.alloc()
    k(f's_mul_i32 s31, s22, {CH_LDS}')
    k('s_lshl_b32 s57, s23, 8')
    k('s_add_u32 s57, s57, s31')
    k(f'v_lshlrev_b32 v{wa}, 2, v{lane}')
    k(f'v_add_u32 v{wa}, s57, v{wa}')
    ar=[k.v.alloc(),k.v.alloc()]; ai=[k.v.alloc(),k.v.alloc()]
    br=[k.v.alloc(),k.v.alloc()]; bi=[k.v.alloc(),k.v.alloc()]
    pk=[k.v.alloc() for _ in range(4)]
    def cmul(dr,di,xr,xi,wr,wi):
        k(f'v_mul_f32 v{dr}, v{xr}, v{wr}')
        k(f'v_mul_f32 v{di}, v{xr}, v{wi}')
        k(f'v_fma_f32 v{dr}, -v{xi}, v{wi}, v{dr}')
        k(f'v_fmac_f32 v{di}, v{xi}, v{wr}')
    k(f'v_mov_b32 v{ar[0]}, v{cr}')
    k(f'v_mov_b32 v{ai[0]}, v{ci}')
    k(f'v_mov_b32 v{br[0]}, 1.0')
    k(f'v_mov_b32 v{bi[0]}, 0')
    orr=k.v.alloc(); oi=k.v.alloc()
    npk=0
    def put(row,r,i,neg):
        nonlocal npk
        q=pk[npk%4]; npk+=1
        k(f'v_cvt_pk_bf16_f32 v{q}, v{r}, {"-" if neg else ""}v{i}')
        k(f'ds_write_b32 v{wa}, v{q} offset:{row*RSK}')
    for i in range(33):
        cur=i&1; nx=cur^1
        put(i,ar[cur],ai[cur],True)
        if i<32: put(37+i,br[cur],bi[cur],False)
        if i<4:
            cmul(orr,oi,ar[cur],ai[cur],w1[0],w1[1])
            put(33+i,orr,oi,True)
        if i<32: cmul(ar[nx],ai[nx],ar[cur],ai[cur],W[0],W[1])
        if i<31: cmul(br[nx],bi[nx],br[cur],bi[cur],w2[0],w2[1])
    k('s_waitcnt lgkmcnt(0)')
    k.stamp(3)
    k('s_barrier')
    aa=k.v.alloc(); ba=k.v.alloc()
    k(f'v_and_b32 v{t0}, 15, v{lane}')
    k(f'v_mul_u32_u24 v{aa}, {RSK}, v{t0}')
    k(f'v_lshrrev_b32 v{t1}, 4, v{lane}')
    k(f'v_lshlrev_b32 v{t1}, 4, v{t1}')
    k(f'v_add3_u32 v{aa}, v{aa}, v{t1}, s31')
    k(f's_mul_i32 s57, s23, {16*RSK}')
    k(f's_add_u32 s57, s57, {37*RSK}')
    k(f'v_add_u32 v{ba}, s57, v{aa}')
    acc=[k.v.alloc(4,4) for _ in range(3)]
    for a in acc:
        for r in range(4): k(f'v_mov_b32 v{a+r}, 0')
    fa=[[k.v.alloc(4,4) for _ in range(3)] for _ in range(2)]
    fb=[k.v.alloc(4,4) for _ in range(2)]
    def ld(ks):
        s=ks&1
        k(f'ds_read_b128 {V(fb[s],4)}, v{ba} offset:{ks*64}')
        for mt in range(3):
            k(f'ds_read_b128 {V(fa[s][mt],4)}, v{aa} offset:{mt*16*RSK+ks*64}')
    ld(0)
    for ks in range(8):
        if ks<7:
            ld(ks+1); k('s_waitcnt lgkmcnt(4)')
        else: k('s_waitcnt lgkmcnt(0)')
        s=ks&1
        for mt in range(3):
            k(f'v_mfma_f32_16x16x32_bf16 {V(acc[mt],4)}, {V(fa[s][mt],4)}, {V(fb[s],4)}, {V(acc[mt],4)}')
    k.stamp(4)
    k('s_barrier')
    ta=k.v.alloc()
    k(f'v_lshrrev_b32 v{t1}, 4, v{lane}')
    k(f'v_lshlrev_b32 v{t1}, 8, v{t1}')
    k(f'v_lshlrev_b32 v{t0}, 1, v{t0}')
    k(f's_lshl_b32 s57, s23, 5')
    k(f's_add_u32 s57, s57, s31')
    k(f'v_add3_u32 v{ta}, v{t0}, v{t1}, s57')
    for mt in range(3):
        for h in range(2):
            q=pk[(2*mt+h)%4]
            k(f'v_cvt_pk_bf16_f32 v{q}, v{acc[mt]+2*h}, v{acc[mt]+2*h+1}')
            k(f'ds_write_b16 v{ta}, v{q} offset:{(16*mt+2*h)*64}')
            k(f'ds_write_b16_d16_hi v{ta}, v{q} offset:{(16*mt+2*h+1)*64}')
    k('s_waitcnt lgkmcnt(0)')
    k.stamp(5)
    k('s_barrier')
    o=[k.v.alloc(4,4),k.v.alloc(4,4)]
    gl=[k.v.alloc(8),k.v.alloc(8)]
    for c in range(2):
        for i in range(8):
            k(f'ds_read_u16 v{gl[c]+i}, v{g[i]} offset:{c*CH_LDS}')
    so=k.v.alloc()
    k(f'v_lshlrev_b32 v{so}, 4, v0')
    k(f's_mul_i32 s58, s21, {2*KLD}')
    k(f's_add_u32 s59, s58, {KLD}')
    for c in range(2):
        k(f's_waitcnt lgkmcnt({8*(1-c)})')
        for i in range(4):
            k(f'v_lshl_or_b32 v{o[c]+i}, v{gl[c]+2*i+1}, 16, v{gl[c]+2*i}')
        k(f'buffer_store_dwordx4 {V(o[c],4)}, v{so}, s[48:51], s{58+c} offen sc1')
    z=k.v.alloc(4,4)
    for r in range(4): k(f'v_mov_b32 v{z+r}, 0')
    k(f'v_lshrrev_b32 v{t0}, 2, v0')
    k(f'v_mul_u32_u24 v{t0}, {KLD}, v{t0}')
    k(f'v_and_b32 v{t1}, 3, v0')
    k(f'v_lshlrev_b32 v{t1}, 4, v{t1}')
    k(f'v_add3_u32 v{t0}, v{t0}, v{t1}, s58')
    k(f'v_add_u32 v{t0}, 4096, v{t0}')
    k(f'v_cmp_gt_u32 vcc, 8, v0')
    k('s_and_saveexec_b64 s[60:61], vcc')
    lz=k.lab('kz')
    k(f's_cbranch_execz {lz}')
    k(f'buffer_store_dwordx4 {V(z,4)}, v{t0}, s[48:51], 0 offen sc1')
    k.label(lz)
    k.end(0)

def role_cs(k):
    k.c('======== column sums of W1 (f32) and b1 as f32 : 64 columns per workgroup ========')
    k('s_load_dwordx4 s[4:7], s[0:1], 64')
    k('s_load_dwordx2 s[14:15], s[0:1], 112')
    lane=k.v.alloc(); voff=k.v.alloc(); t0=k.v.alloc(); t1=k.v.alloc()
    k('s_sub_u32 s21, s2, 512')
    k(f'v_and_b32 v{lane}, 63, v0')
    k(f'v_lshrrev_b32 v{t0}, 3, v0')
    k(f'v_mul_u32_u24 v{voff}, {F*2}, v{t0}')
    k(f'v_and_b32 v{t1}, 7, v0')
    k(f'v_lshlrev_b32 v{t1}, 4, v{t1}')
    k(f'v_add_u32 v{voff}, v{voff}, v{t1}')
    k('s_lshl_b32 s22, s21, 7')
    k('s_waitcnt lgkmcnt(0)')
    srd(k,8,4,0,D*F*2)
    srd(k,16,14,WS_CS,16384)
    srd(k,24,6,0,F*2)
    x=[k.v.alloc(4,4) for _ in range(16)]
    for i in range(16):
        k(f's_add_u32 s23, s22, {i*32*F*2}')
        k(f'buffer_load_dwordx4 {V(x[i],4)}, v{voff}, s[8:11], s23 offen')
    bq=k.v.alloc()
    k(f'v_lshlrev_b32 v{t1}, 1, v{lane}')
    k(f'buffer_load_ushort v{bq}, v{t1}, s[24:27], s22 offen')
    acc=k.v.alloc(8)
    k('s_mov_b32 s30, 0xffff0000')
    for i in range(16):
        k(f's_waitcnt vmcnt({16-i})')
        for j in range(4):
            if i==0:
                k(f'v_lshlrev_b32 v{acc+2*j}, 16, v{x[i]+j}')
                k(f'v_and_b32 v{acc+2*j+1}, s30, v{x[i]+j}')
            else:
                k(f'v_lshlrev_b32 v{t0}, 16, v{x[i]+j}')
                k(f'v_and_b32 v{t1}, s30, v{x[i]+j}')
                k(f'v_add_f32 v{acc+2*j}, v{acc+2*j}, v{t0}')
                k(f'v_add_f32 v{acc+2*j+1}, v{acc+2*j+1}, v{t1}')
    wa=k.v.alloc()
    k(f'v_lshrrev_b32 v{t0}, 3, v0')
    k(f'v_lshlrev_b32 v{wa}, 8, v{t0}')
    k(f'v_and_b32 v{t1}, 7, v0')
    k(f'v_lshlrev_b32 v{t1}, 5, v{t1}')
    k(f'v_add_u32 v{wa}, v{wa}, v{t1}')
    for j in range(8):
        k(f'ds_write_b32 v{wa}, v{acc+j} offset:{4*j}')
    k('s_waitcnt lgkmcnt(0)')
    k('s_barrier')
    k(f'v_cmp_gt_u32 vcc, 64, v0')
    k('s_and_saveexec_b64 s[60:61], vcc')
    lz=k.lab('csx')
    k(f's_cbranch_execz {lz}')
    ra=k.v.alloc(); s=k.v.alloc()
    k(f'v_lshlrev_b32 v{ra}, 2, v{lane}')
    tt=[x[0]+i for i in range(32)]
    for i in range(32):
        k(f'ds_read_b32 v{tt[i]}, v{ra} offset:{i*256}')
        if i%8==7:
            k('s_waitcnt lgkmcnt(0)')
            for j in range(i-7,i+1):
                if j==0: k(f'v_mov_b32 v{s}, v{tt[0]}')
                else: k(f'v_add_f32 v{s}, v{s}, v{tt[j]}')
    k('s_lshl_b32 s23, s21, 8')
    k(f'buffer_store_dword v{s}, v{ra}, s[16:19], s23 offen sc1')
    k('s_waitcnt vmcnt(1)')
    k(f'v_lshlrev_b32 v{bq}, 16, v{bq}')
    k('s_add_u32 s23, s23, 8192')
    k(f'buffer_store_dword v{bq}, v{ra}, s[16:19], s23 offen sc1')
    k.label(lz)
    k.end(0)

def build_k1(name='k1_prep_kernel'):
    k=KB(name)
    k('.text'); k(f'.globl {name}'); k('.p2align 8'); k(f'.type {name},@function'); k.label(name)
    lk=k.lab('kgen'); lc=k.lab('cs'); lx=k.lab('exit')
    k.start_stamp()
    k('s_cmp_ge_u32 s2, 540'); k(f's_cbranch_scc1 {lx}')
    k('s_cmp_ge_u32 s2, 512'); k(f's_cbranch_scc1 {lc}')
    k('s_cmp_ge_u32 s2, 256'); k(f's_cbranch_scc1 {lk}')
    m=k.v.mark(); role_ln(k); k.v.release(m)
    k.label(lk); role_kgen(k); k.v.release(m)
    k.label(lc); role_cs(k); k.v.release(m)
    k.label(lx); k('s_endpgm')
    return k, dict(name=name,grid=540,block=256,lds=2*CH_LDS,vgpr=k.v.maxused+1,sgpr=64)
```

```python
from kb import *
from k1 import *
CHB=17088; LP=0; LO=512; XO=4608; EO=8704; OO=12864
def build_k2(name='k2_conv_kernel', mimic=True):
    k=KB(name)
    k('.text'); k(f'.globl {name}'); k('.p2align 8'); k(f'.type {name},@function'); k.label(name)
    lx=k.lab('exit')
    k.start_stamp()
    k('s_cmp_ge_u32 s2, 256'); k(f's_cbranch_scc1 {lx}')
    k('s_load_dwordx2 s[4:5], s[0:1], 48')
    k('s_load_dwordx2 s[6:7], s[0:1], 112')
    lane=k.v.alloc(); wv=k.v.alloc(); t0=k.v.alloc(); t1=k.v.alloc(); t2=k.v.alloc()
    k(f'v_and_b32 v{lane}, 63, v0')
    k(f'v_lshrrev_b32 v{wv}, 6, v0')
    k('s_and_b32 s21, s2, 7'); k('s_lshl_b32 s21, s21, 5'); k('s_lshr_b32 s22, s2, 3'); k('s_add_u32 s21, s21, s22')
    k(f'v_readfirstlane_b32 s20, v{wv}')
    k('s_lshl_b32 s24, s21, 1')
    vlx=k.v.alloc(); vk=k.v.alloc()
    k(f'v_lshrrev_b32 v{t0}, 1, v0')
    k(f'v_lshlrev_b32 v{vlx}, 13, v{t0}')
    k(f'v_and_b32 v{t1}, 1, v0')
    k(f'v_lshl_add_u32 v{vlx}, v{t1}, 4, v{vlx}')
    k(f'v_lshrrev_b32 v{t2}, 7, v0')
    k(f'v_mul_u32_u24 v{vk}, {KLD}, v{t2}')
    k(f'v_and_b32 v{t0}, 127, v0')
    k(f'v_lshl_add_u32 v{vk}, v{t0}, 4, v{vk}')
    k('s_lshr_b32 s22, s20, 1')
    k('s_and_b32 s23, s20, 1')
    k('s_waitcnt lgkmcnt(0)')
    k('s_lshl_b32 s27, s21, 2')
    k('s_load_dword s28, s[4:5], s27')
    srd(k,8,6,WS_LG,2<<20)
    srd(k,12,6,WS_XG,2<<20)
    srd(k,16,6,WS_KR,D*KLD+64)
    srd(k,32,6,WS_HB,2<<20)
    k('s_lshl_b32 s25, s24, 4')
    k(f's_add_u32 s26, s25, {128*8192}')
    ld=[k.v.alloc(4,4) for _ in range(4)]
    k(f'buffer_load_dwordx4 {V(ld[0],4)}, v{vlx}, s[8:11], s25 offen')
    k(f'buffer_load_dwordx4 {V(ld[1],4)}, v{vlx}, s[8:11], s26 offen')
    k(f's_mul_i32 s29, s24, {KLD}')
    kk=[k.v.alloc(4,4) for _ in range(3)]; kn=[k.v.alloc() for _ in range(3)]
    for j in range(2):
        k(f'buffer_load_dwordx4 {V(kk[j],4)}, v{vk}, s[16:19], s29 offen offset:{j*2048}')
        k(f'buffer_load_dword v{kn[j]}, v{vk}, s[16:19], s29 offen offset:{j*2048+16}')
    k(f'buffer_load_dwordx4 {V(ld[2],4)}, v{vlx}, s[12:15], s25 offen')
    k(f'buffer_load_dwordx4 {V(ld[3],4)}, v{vlx}, s[12:15], s26 offen')
    wl=k.v.alloc(); wk=k.v.alloc(); wz=k.v.alloc()
    k(f'v_and_b32 v{t1}, 1, v0')
    k(f'v_mul_u32_u24 v{wl}, {CHB}, v{t1}')
    k(f'v_lshrrev_b32 v{t0}, 1, v0')
    k(f'v_lshl_add_u32 v{wl}, v{t0}, 4, v{wl}')
    k(f'v_mul_u32_u24 v{wk}, {CHB}, v{t2}')
    k(f'v_and_b32 v{t0}, 127, v0')
    k(f'v_lshl_add_u32 v{wk}, v{t0}, 4, v{wk}')
    z=k.v.alloc(4,4)
    for r in range(4): k(f'v_mov_b32 v{z+r}, 0')
    k(f'v_bfe_u32 v{t0}, v0, 5, 1')
    k(f'v_mul_u32_u24 v{wz}, {CHB}, v{t0}')
    k(f'v_and_b32 v{t0}, 31, v0')
    k(f'v_lshl_add_u32 v{wz}, v{t0}, 4, v{wz}')
    k(f'v_cmp_gt_u32 vcc, 64, v0')
    k('s_and_saveexec_b64 s[40:41], vcc')
    l1=k.lab('z1'); k(f's_cbranch_execz {l1}')
    k(f'ds_write_b128 v{wz}, {V(z,4)} offset:{LP}')
    k.label(l1); k('s_mov_b64 exec, s[40:41]')
    k(f'v_bfe_u32 v{t0}, v0, 2, 1')
    k(f'v_mul_u32_u24 v{wz}, {CHB}, v{t0}')
    k(f'v_bfe_u32 v{t0}, v0, 1, 1')
    k(f'v_mul_u32_u24 v{t0}, {OO-EO}, v{t0}')
    k(f'v_and_b32 v{t1}, 1, v0')
    k(f'v_lshlrev_b32 v{t1}, 4, v{t1}')
    k(f'v_add3_u32 v{wz}, v{wz}, v{t0}, v{t1}')
    k(f'v_lshrrev_b32 v{t0}, 3, v0')
    k(f'v_cmp_eq_u32 vcc, 8, v{t0}')
    k('s_and_saveexec_b64 s[40:41], vcc')
    l2=k.lab('z2'); k(f's_cbranch_execz {l2}')
    k(f'ds_write_b128 v{wz}, {V(z,4)} offset:{EO+4096}')
    k.label(l2); k('s_mov_b64 exec, s[40:41]')
    vB=k.v.alloc(); vA=[k.v.alloc() for _ in range(4)]
    k(f's_mul_i32 s30, s22, {CHB}')
    k('s_lshl_b32 s31, s23, 8')
    k(f'v_and_b32 v{t0}, 15, v{lane}')
    k(f'v_lshrrev_b32 v{t1}, 4, v{lane}')
    k(f'v_lshlrev_b32 v{vB}, 5, v{t0}')
    k(f'v_lshl_add_u32 v{vB}, v{t1}, 4, v{vB}')
    k(f's_sub_u32 s36, s30, s31')
    k(f's_add_u32 s37, s36, {LO-32-192}')
    k(f'v_add_u32 v{vB}, s37, v{vB}')
    k(f'v_sub_u32 v{t2}, 2031, v{t0}')
    k(f'v_lshrrev_b32 v{t2}, 1, v{t2}')
    k(f'v_lshlrev_b32 v{t2}, 2, v{t2}')
    k(f'v_lshl_add_u32 v{t2}, v{t1}, 4, v{t2}')
    k(f'v_and_b32 v{t0}, 1, v{t0}')
    k(f'v_mul_u32_u24 v{t0}, {OO-EO}, v{t0}')
    k(f'v_sub_u32 v{t2}, v{t2}, v{t0}')
    k(f's_add_u32 s37, s36, {OO-192-3584}')
    for j in range(4):
        k(f's_add_u32 s38, s37, {1024*j}')
        k(f'v_add_u32 v{vA[j]}, s38, v{t2}')
    k.stamp(1)
    k('s_waitcnt vmcnt(6)')
    k.stamp(2)
    k(f'ds_write_b128 v{wl}, {V(ld[0],4)} offset:{LO}')
    k(f'ds_write_b128 v{wl}, {V(ld[1],4)} offset:{LO+2048}')
    od=k.v.alloc(4,4)
    for j in range(2):
        k(f's_waitcnt vmcnt({4-2*j})')
        k(f'ds_write_b128 v{wk}, {V(kk[j],4)} offset:{EO+j*2048}')
        for r in range(3):
            k(f'v_alignbyte_b32 v{od+r}, v{kk[j]+r+1}, v{kk[j]+r}, 2')
        k(f'v_alignbyte_b32 v{od+3}, v{kn[j]}, v{kk[j]+3}, 2')
        k(f'ds_write_b128 v{wk}, {V(od,4)} offset:{OO+j*2048}')
    k('s_waitcnt vmcnt(0)')
    k(f'ds_write_b128 v{wl}, {V(ld[2],4)} offset:{XO}')
    k(f'ds_write_b128 v{wl}, {V(ld[3],4)} offset:{XO+2048}')
    acc=[k.v.alloc(4,4) for _ in range(8)]
    for a in acc:
        for r in range(4): k(f'v_mov_b32 v{a+r}, 0')
    fB=[[k.v.alloc(4,4) for _ in range(8)] for _ in range(2)]
    fA=[[k.v.alloc(4,4) for _ in range(8)] for _ in range(2)]
    k('s_waitcnt lgkmcnt(0)')
    k.stamp(3)
    k('s_barrier')
    def loads(i):
        p=i&1; out=[]
        for s in range(8):
            out.append(f'ds_read_b128 {V(fB[p][s],4)}, v{vB} offset:{64*(3-i)+512*s}')
        al=[]
        for s in range(8):
            j=(7-s)//2; hi=0 if (7-2*j)==s else 128
            o=16*(3-i)+hi
            al.append(f'ds_read2_b32 {V(fA[p][s],2)}, v{vA[j]} offset0:{o} offset1:{o+1}')
            al.append(f'ds_read2_b32 {V(fA[p][s]+2,2)}, v{vA[j]} offset0:{o+2} offset1:{o+3}')
        return al[:2]+out+al[2:]
    for l in loads(0): k(l)
    k('s_waitcnt lgkmcnt(0)')
    k.stamp(4)
    for i in range(4):
        p=i&1
        nxt=loads(i+1) if i<3 else []
        n=0
        for s in range(8):
            for tp in range(8-s):
                k(f'v_mfma_f32_16x16x32_bf16 {V(acc[s+tp],4)}, {V(fA[p][s],4)}, {V(fB[p][tp],4)}, {V(acc[s+tp],4)}')
                if n<len(nxt): k(nxt[n]); n+=1
        if i<3: k('s_waitcnt lgkmcnt(0)')
    k.stamp(5)
    k('s_barrier')
    pa=k.v.alloc(); pr=k.v.alloc()
    k(f'v_lshlrev_b32 v{pa}, 4, v{lane}')
    k(f's_lshl_b32 s36, s23, 12')
    k(f's_add_u32 s37, s30, {EO}')
    k(f's_add_u32 s38, s37, s36')
    k(f's_xor_b32 s36, s36, 4096')
    k(f's_add_u32 s39, s37, s36')
    k(f'v_add_u32 v{pr}, s39, v{pa}')
    k(f'v_add_u32 v{pa}, s38, v{pa}')
    lA=k.lab('snd1'); lB=k.lab('sndx')
    k('s_cmp_eq_u32 s23, 0'); k(f's_cbranch_scc0 {lA}')
    for j in range(4): k(f'ds_write_b128 v{pa}, {V(acc[4+j],4)} offset:{j*1024}')
    k(f's_branch {lB}')
    k.label(lA)
    for j in range(4): k(f'ds_write_b128 v{pa}, {V(acc[j],4)} offset:{j*1024}')
    k.label(lB)
    ea=k.v.alloc(); so=k.v.alloc()
    k(f'v_and_b32 v{t0}, 15, v{lane}')
    k(f'v_lshrrev_b32 v{t1}, 4, v{lane}')
    k(f'v_lshlrev_b32 v{ea}, 5, v{t0}')
    k(f'v_lshl_add_u32 v{ea}, v{t1}, 3, v{ea}')
    k(f'v_add_u32 v{ea}, s30, v{ea}')
    k(f'v_lshrrev_b32 v{t2}, 3, v{t0}')
    k(f'v_lshlrev_b32 v{so}, 17, v{t2}')
    k(f'v_and_b32 v{t0}, 7, v{t0}')
    k(f'v_lshl_add_u32 v{so}, v{t0}, 5, v{so}')
    k(f'v_lshl_add_u32 v{so}, v{t1}, 3, v{so}')
    k('s_lshl_b32 s29, s22, 4'); k('s_lshr_b32 s28, s28, s29'); k('s_lshl_b32 s28, s28, 16')
    k('s_add_u32 s24, s24, s22'); k('s_lshl_b32 s24, s24, 8')
    k('s_mov_b32 s42, 0xffff0000')
    k('s_waitcnt lgkmcnt(0)')
    k('s_barrier')
    k.stamp(6)
    part=[fB[0][j] for j in range(4)]
    lnr=[fB[0][4+j//2]+2*(j%2) for j in range(4)]
    xr=[fB[0][6+j//2]+2*(j%2) for j in range(4)]
    T=[fA[0][0]+i for i in range(4)]+[fA[0][1]+i for i in range(4)]
    def epi(keep):
        for j in range(4):
            k(f'ds_read_b128 {V(part[j],4)}, v{pr} offset:{j*1024}')
        for j in range(4):
            t=keep+j
            k(f'ds_read_b64 {V(lnr[j],2)}, v{ea} offset:{LO+512*t}')
            k(f'ds_read_b64 {V(xr[j],2)}, v{ea} offset:{XO+512*t}')
        k('s_waitcnt lgkmcnt(0)')
        for j in range(4):
            t=keep+j; a=acc[t]
            for r in range(4): k(f'v_add_f32 v{a+r}, v{a+r}, v{part[j]+r}')
            for h in range(2):
                y0=a+2*h; y1=y0+1; l=lnr[j]+h; x=xr[j]+h
                a0,a1,b0,b1=T[0],T[1],T[2],T[3]
                k(f'v_lshlrev_b32 v{a0}, 16, v{l}')
                k(f'v_and_b32 v{a1}, s42, v{l}')
                if mimic:
                    k(f'v_mul_f32 v{a0}, s28, v{a0}')
                    k(f'v_mul_f32 v{a1}, s28, v{a1}')
                    k(f'v_cvt_pk_bf16_f32 v{b0}, v{a0}, v{a1}')
                    k(f'v_cvt_pk_bf16_f32 v{b1}, v{y0}, v{y1}')
                    k(f'v_lshlrev_b32 v{a0}, 16, v{b0}')
                    k(f'v_and_b32 v{a1}, s42, v{b0}')
                    k(f'v_lshlrev_b32 v{y0}, 16, v{b1}')
                    k(f'v_and_b32 v{y1}, s42, v{b1}')
                    k(f'v_add_f32 v{a0}, v{a0}, v{y0}')
                    k(f'v_add_f32 v{a1}, v{a1}, v{y1}')
                    k(f'v_cvt_pk_bf16_f32 v{b0}, v{a0}, v{a1}')
                    k(f'v_lshlrev_b32 v{a0}, 16, v{b0}')
                    k(f'v_and_b32 v{a1}, s42, v{b0}')
                else:
                    k(f'v_fma_f32 v{a0}, v{a0}, s28, v{y0}')
                    k(f'v_fma_f32 v{a1}, v{a1}, s28, v{y1}')
                k(f'v_lshlrev_b32 v{b0}, 16, v{x}')
                k(f'v_and_b32 v{b1}, s42, v{x}')
                k(f'v_add_f32 v{a0}, v{a0}, v{b0}')
                k(f'v_add_f32 v{a1}, v{a1}, v{b1}')
                k(f'v_cvt_pk_bf16_f32 v{T[4+(j&1)*2+h]}, v{a0}, v{a1}')
            k(f's_add_u32 s43, s24, {t*262144}')
            k(f'buffer_store_dwordx2 {V(T[4+(j&1)*2],2)}, v{so}, s[32:35], s43 offen sc1')
    lC=k.lab('epi1')
    k('s_cmp_eq_u32 s23, 0'); k(f's_cbranch_scc0 {lC}')
    epi(0); k.stamp(7); k.end(1)
    k.label(lC); epi(4); k.stamp(7); k.end(1)
    k.label(lx); k('s_endpgm')
    return k, dict(name=name,grid=256,block=256,lds=2*CHB,vgpr=k.v.maxused+1,sgpr=48)
```

```python
from kb import *
from k1 import *
import math
SLOT=30720; WOFF=16384
def build_k3(name='k3_ffn1_kernel', store_flags='sc1'):
    k=KB(name)
    k('.text'); k(f'.globl {name}'); k('.p2align 8'); k(f'.type {name},@function'); k.label(name)
    lx=k.lab('exit')
    k.start_stamp()
    k('s_cmp_ge_u32 s2, 256'); k(f's_cbranch_scc1 {lx}')
    k('s_load_dwordx2 s[4:5], s[0:1], 64')
    k('s_load_dwordx2 s[6:7], s[0:1], 112')
    lane=k.v.alloc(); wv=k.v.alloc(); t0=k.v.alloc(); t1=k.v.alloc(); t2=k.v.alloc(); t3=k.v.alloc()
    k(f'v_and_b32 v{lane}, 63, v0')
    k(f'v_lshrrev_b32 v{wv}, 6, v0')
    k('s_and_b32 s21, s2, 7'); k('s_lshr_b32 s22, s2, 3')
    k('s_lshr_b32 s23, s22, 4'); k('s_lshl_b32 s21, s21, 1'); k('s_add_u32 s21, s21, s23')
    k('s_and_b32 s22, s22, 15')
    k(f'v_readfirstlane_b32 s20, v{wv}')
    k('s_and_b32 s23, s22, 1')
    vh=[k.v.alloc(),k.v.alloc()]
    for q in range(2):
        k(f'v_lshrrev_b32 v{t0}, 4, v{lane}')
        k(f'v_add_u32 v{t1}, {4*q}, v{t0}')
        k(f'v_bfe_u32 v{t2}, v{lane}, 1, 3')
        k(f'v_xor_b32 v{t1}, v{t1}, v{t2}')
        k(f'v_lshlrev_b32 v{t1}, 5, v{t1}')
        k(f'v_lshl_add_u32 v{t1}, v{t0}, 8, v{t1}')
        k(f'v_and_b32 v{t2}, 1, v{lane}')
        k(f'v_lshl_add_u32 v{vh[q]}, v{t2}, 4, v{t1}')
    vw=[k.v.alloc() for _ in range(4)]
    k('s_mov_b32 s40, 4682')
    sj=[44,45,46,47]
    k(f's_mov_b32 s44, s20'); k('s_add_u32 s45, s20, 4'); k('s_add_u32 s46, s20, 8')
    k('s_and_b32 s47, s20, 1'); k('s_add_u32 s47, s47, 12')
    for q in range(4):
        k(f's_lshl_b32 s41, s{sj[q]}, 6')
        k(f'v_add_u32 v{t0}, s41, v{lane}')
        k(f'v_mul_u32_u24 v{t1}, s40, v{t0}')
        k(f'v_lshrrev_b32 v{t1}, 16, v{t1}')
        k(f'v_mul_u32_u24 v{t2}, 14, v{t1}')
        k(f'v_sub_u32 v{t2}, v{t0}, v{t2}')
        k(f'v_mul_u32_u24 v{t1}, {F*2}, v{t1}')
        k(f'v_lshl_add_u32 v{vw[q]}, v{t2}, 4, v{t1}')
        k(f's_lshl_b32 s{sj[q]}, s{sj[q]}, 10')
        k(f's_add_u32 s{sj[q]}, s{sj[q]}, {WOFF}')
    k('s_waitcnt lgkmcnt(0)')
    srd(k,8,6,WS_HB,2<<20)
    srd(k,12,4,0,D*F*2)
    srd(k,16,6,WS_CS,16384)
    srd(k,32,6,WS_H1,L*F*2)
    cs=[k.v.alloc(4,4) for _ in range(7)]; b1=[k.v.alloc(4,4) for _ in range(7)]
    vq=k.v.alloc()
    k(f'v_lshrrev_b32 v{t0}, 4, v{lane}')
    k(f'v_lshlrev_b32 v{vq}, 4, v{t0}')
    k('s_mul_i32 s24, s22, 448')
    k('s_lshl_b32 s25, s23, 6')
    k('s_add_u32 s26, s24, s25')
    k('s_mul_i32 s27, s23, 384'); k('s_sub_u32 s27, 384, s27'); k('s_add_u32 s27, s27, s24')
    k('s_add_u32 s28, s26, 8192'); k('s_add_u32 s29, s27, 8192')
    for j in range(7):
        if j<6:
            k(f'buffer_load_dwordx4 {V(cs[j],4)}, v{vq}, s[16:19], s26 offen offset:{64*j}')
            k(f'buffer_load_dwordx4 {V(b1[j],4)}, v{vq}, s[16:19], s28 offen offset:{64*j}')
        else:
            k(f'buffer_load_dwordx4 {V(cs[j],4)}, v{vq}, s[16:19], s27 offen')
            k(f'buffer_load_dwordx4 {V(b1[j],4)}, v{vq}, s[16:19], s29 offen')
    k('s_lshl_b32 s48, s21, 17')
    k('s_lshl_b32 s49, s20, 12')
    k('s_add_u32 s48, s48, s49')
    k('s_mul_i32 s50, s22, 224')
    def dma(ch):
        sb=(ch%5)*SLOT
        for q in range(4):
            k(f's_add_u32 m0, s49, {sb+q*1024}')
            k(f's_add_u32 s51, s48, {ch*16384+q*1024}')
            k(f'buffer_load_dwordx4 v{vh[q&1]}, s[8:11], s51 offen lds')
        for q in range(4):
            k(f's_add_u32 m0, s{sj[q]}, {sb}')
            k(f's_add_u32 s51, s50, {ch*64*F*2}')
            k(f'buffer_load_dwordx4 v{vw[q]}, s[12:15], s51 offen lds')
    for ch in range(4): dma(ch)
    vH=[[k.v.alloc() for _ in range(2)] for _ in range(3)]
    vWa=[k.v.alloc() for _ in range(3)]; vWb=[k.v.alloc() for _ in range(3)]
    k(f'v_lshrrev_b32 v{t0}, 2, v{lane}')
    k(f'v_and_b32 v{t1}, 7, v{t0}')
    k(f'v_and_b32 v{t3}, 3, v{lane}')
    k(f'v_lshlrev_b32 v{t3}, 3, v{t3}')
    k('s_lshl_b32 s41, s20, 1')
    for c in range(2):
        k(f's_add_u32 s42, s41, {c}')
        k(f'v_xor_b32 v{t2}, s42, v{t1}')
        k(f'v_lshlrev_b32 v{t2}, 5, v{t2}')
        k(f'v_lshl_add_u32 v{t2}, v{t0}, 8, v{t2}')
        k(f'v_add_u32 v{vH[0][c]}, v{t2}, v{t3}')
    k(f'v_mul_u32_u24 v{t2}, 224, v{t0}')
    k(f'v_add_u32 v{t2}, v{t2}, v{t3}')
    k('s_lshl_b32 s41, s23, 5'); k(f's_add_u32 s41, s41, {WOFF}')
    k(f'v_add_u32 v{vWa[0]}, s41, v{t2}')
    k('s_mul_i32 s41, s23, 192'); k(f's_sub_u32 s41, {WOFF+192}, s41')
    k(f'v_add_u32 v{vWb[0]}, s41, v{t2}')
    for st in (1,2):
        for c in range(2): k(f'v_add_u32 v{vH[st][c]}, {st*2*SLOT}, v{vH[0][c]}')
        k(f'v_add_u32 v{vWa[st]}, {st*2*SLOT}, v{vWa[0]}')
        k(f'v_add_u32 v{vWb[st]}, {st*2*SLOT}, v{vWb[0]}')
    acc=[[k.v.alloc(4,4) for _ in range(2)] for _ in range(7)]
    ssum=[k.v.alloc(4,4) for _ in range(2)]; ssq=[k.v.alloc(4,4) for _ in range(2)]
    ones=k.v.alloc(4,4)
    for a in sum(acc,[])+ssum+ssq:
        for r in range(4): k(f'v_mov_b32 v{a+r}, 0')
    k('s_mov_b32 s41, 0x3f803f80')
    for r in range(4): k(f'v_mov_b32 v{ones+r}, s41')
    fH=[[k.v.alloc(4,4) for _ in range(2)] for _ in range(2)]
    fW=[[k.v.alloc(4,4) for _ in range(7)] for _ in range(2)]
    def reads(s):
        ch=s>>1; ks=s&1; slot=ch%5; st=slot//2; sb=(slot%2)*SLOT; p=s&1; out=[]
        for c in range(2):
            for rr in range(2):
                out.append(f'ds_read_b64_tr_b16 {V(fH[p][c]+2*rr,2)}, v{vH[st][c]} offset:{sb+(32*ks+16*rr)*256}')
        for j in range(7):
            for rr in range(2):
                if j<6: out.append(f'ds_read_b64_tr_b16 {V(fW[p][j]+2*rr,2)}, v{vWa[st]} offset:{sb+(32*ks+16*rr)*224+32*j}')
                else: out.append(f'ds_read_b64_tr_b16 {V(fW[p][j]+2*rr,2)}, v{vWb[st]} offset:{sb+(32*ks+16*rr)*224}')
        return out
    k.stamp(1)
    k('s_waitcnt vmcnt(24)')
    k.stamp(2)
    k('s_barrier')
    dma(4)
    for l in reads(0): k(l)
    for s in range(16):
        p=s&1
        k('s_waitcnt lgkmcnt(0)')
        if s==1: k.stamp(3)
        if s==8: k.stamp(4)
        nxt=[]
        if s<15:
            if (s+1)%2==0:
                c1=(s+1)//2
                last=min(c1+3,7)
                k(f's_waitcnt vmcnt({8*(last-c1)})')
                k('s_barrier')
                if c1+4<=7: dma(c1+4)
            nxt=reads(s+1)
        mf=[]
        for c in range(2):
            mf.append(f'v_mfma_f32_16x16x32_bf16 {V(ssum[c],4)}, {V(ones,4)}, {V(fH[p][c],4)}, {V(ssum[c],4)}')
            mf.append(f'v_mfma_f32_16x16x32_bf16 {V(ssq[c],4)}, {V(fH[p][c],4)}, {V(fH[p][c],4)}, {V(ssq[c],4)}')
        for j in range(7):
            for c in range(2):
                mf.append(f'v_mfma_f32_16x16x32_bf16 {V(acc[j][c],4)}, {V(fW[p][j],4)}, {V(fH[p][c],4)}, {V(acc[j][c],4)}')
        n=0
        for m in mf:
            k(m)
            if n<len(nxt): k(nxt[n]); n+=1
    k.stamp(5)
    sel=k.v.alloc(); bp=k.v.alloc()
    rstd=[k.v.alloc(2,2) for _ in range(2)]; nmr=[k.v.alloc(2,2) for _ in range(2)]
    k(f'v_and_b32 v{t0}, 15, v{lane}')
    k(f'v_lshrrev_b32 v{t1}, 2, v{t0}')
    k(f'v_lshl_add_u32 v{bp}, v{t1}, 4, v{t0}')
    k(f'v_lshlrev_b32 v{bp}, 2, v{bp}')
    k(f'v_and_b32 v{sel}, 3, v{t0}')
    k('s_mov_b32 s42, 0xffff0000')
    k(f's_mov_b32 s43, {f32hex(1.0/512)}')
    k(f's_mov_b32 s52, {f32hex(1e-5)}')
    for c in range(2):
        q=ssq[c]
        k(f'v_cmp_eq_u32 vcc, 1, v{sel}')
        k(f'v_cndmask_b32 v{q}, v{q}, v{q+1}, vcc')
        k(f'v_cmp_eq_u32 vcc, 2, v{sel}')
        k(f'v_cndmask_b32 v{q}, v{q}, v{q+2}, vcc')
        k(f'v_cmp_eq_u32 vcc, 3, v{sel}')
        k(f'v_cndmask_b32 v{q}, v{q}, v{q+3}, vcc')
        k(f'ds_bpermute_b32 v{q+1}, v{bp}, v{q}')
    k('s_waitcnt lgkmcnt(0)')
    def rb(dst,src):
        k(f'v_cvt_pk_bf16_f32 v{dst}, v{src}, v{src}')
        k(f'v_and_b32 v{dst}, s42, v{dst}')
    for c in range(2):
        m=ssum[c]; q=ssq[c]+1
        k(f'v_mul_f32 v{m}, s43, v{m}')
        k(f'v_mul_f32 v{q}, s43, v{q}')
        k(f'v_fma_f32 v{q}, -v{m}, v{m}, v{q}')
        k(f'v_max_f32 v{q}, 0, v{q}')
        rb(q,q)
        k(f'v_add_f32 v{q}, s52, v{q}')
        rb(q,q)
        k(f'v_sqrt_f32 v{q}, v{q}')
        rb(q,q)
        k(f'v_rcp_f32 v{rstd[c]}, v{q}')
        rb(m,m)
        k(f'v_mul_f32 v{nmr[c]}, v{m}, v{rstd[c]}')
        k(f'v_sub_f32 v{nmr[c]}, 0, v{nmr[c]}')
    c0=math.sqrt(2/math.pi)
    k1c=-2*c0*LOG2E; k3c=k1c*0.044715
    kc1=k.v.alloc(2,2); one=k.v.alloc(2,2)
    k(f's_mov_b32 s54, {f32hex(k3c)}'); k(f's_mov_b32 s55, {f32hex(k3c)}')
    k(f'v_mov_b32 v{kc1}, {f32hex(k1c)}'); k(f'v_mov_b32 v{kc1+1}, {f32hex(k1c)}')
    k(f'v_mov_b32 v{one}, 1.0'); k(f'v_mov_b32 v{one+1}, 1.0')
    so=k.v.alloc()
    k(f'v_lshlrev_b32 v{so}, 4, v{lane}')
    k('s_lshl_b32 s56, s21, 1'); k('s_lshr_b32 s57, s20, 1'); k('s_add_u32 s56, s56, s57')
    k(f's_mul_i32 s56, s56, {56*4096}')
    k('s_and_b32 s57, s20, 1'); k('s_lshl_b32 s57, s57, 11'); k('s_add_u32 s56, s56, s57')
    k('s_mul_i32 s58, s22, 7')
    k('s_add_u32 s59, s58, s23'); k('s_lshr_b32 s59, s59, 1'); k('s_lshl_b32 s59, s59, 12'); k('s_add_u32 s59, s59, s56')
    k('s_mul_i32 s60, s23, 7'); k('s_sub_u32 s60, 6, s60'); k('s_add_u32 s60, s60, s58'); k('s_lshr_b32 s60, s60, 1')
    k('s_lshl_b32 s60, s60, 12'); k('s_add_u32 s60, s60, s56'); k('s_lshl_b32 s61, s23, 3'); k('s_add_u32 s60, s60, s61')
    k('s_waitcnt vmcnt(0)')
    k.stamp(6)
    pool=[fW[0][j] for j in range(7)]+[fW[1][j] for j in range(7)]
    outp=[fH[0][0],fH[0][1],fH[1][0],fH[1][1]]
    def gelu_tile(a,csr,b1r,c,tmp,dst):
        X=tmp[0]; E=tmp[1]; seq=[]
        P=lambda r,h: V(r+2*h,2)
        st=[[] for _ in range(9)]
        for h in range(2):
            st[0].append(f'v_pk_fma_f32 {P(X,h)}, {P(csr,h)}, {V(nmr[c],2)}, {P(b1r,h)} op_sel_hi:[1,0,1]')
            st[1].append(f'v_pk_fma_f32 {P(X,h)}, {P(a,h)}, {V(rstd[c],2)}, {P(X,h)} op_sel_hi:[1,0,1]')
            st[2].append(f'v_pk_mul_f32 {P(E,h)}, {P(X,h)}, {P(X,h)}')
            st[3].append(f'v_pk_fma_f32 {P(E,h)}, {P(E,h)}, s[54:55], {V(kc1,2)}')
            st[4].append(f'v_pk_mul_f32 {P(E,h)}, {P(E,h)}, {P(X,h)}')
            st[5]+= [f'v_exp_f32 v{E+2*h}, v{E+2*h}', f'v_exp_f32 v{E+2*h+1}, v{E+2*h+1}']
            st[6].append(f'v_pk_add_f32 {P(E,h)}, {P(E,h)}, {V(one,2)}')
            st[7]+= [f'v_rcp_f32 v{E+2*h}, v{E+2*h}', f'v_rcp_f32 v{E+2*h+1}, v{E+2*h+1}']
            st[8].append(f'v_pk_mul_f32 {P(X,h)}, {P(X,h)}, {P(E,h)}')
        fin=[f'v_cvt_pk_bf16_f32 v{dst+h}, v{X+2*h}, v{X+2*h+1}' for h in range(2)]
        return st,fin
    oi=0
    for c in range(2):
        for q in range(3):
            o=outp[oi%4]; oi+=1
            sa,fa=gelu_tile(acc[2*q][c],cs[2*q],b1[2*q],c,(pool[0],pool[1]),o)
            sb,fb=gelu_tile(acc[2*q+1][c],cs[2*q+1],b1[2*q+1],c,(pool[2],pool[3]),o+2)
            for x,y in zip(sa,sb):
                for l in x+y: k(l)
            for l in fa+fb: k(l)
            k(f's_add_u32 s62, s59, {q*4096+c*1024}')
            k(f'buffer_store_dwordx4 {V(o,4)}, v{so}, s[32:35], s62 offen {store_flags}')
    o=outp[oi%4]
    sa,fa=gelu_tile(acc[6][0],cs[6],b1[6],0,(pool[0],pool[1]),o)
    sb,fb=gelu_tile(acc[6][1],cs[6],b1[6],1,(pool[2],pool[3]),o+2)
    for x,y in zip(sa,sb):
        for l in x+y: k(l)
    for l in fa+fb: k(l)
    k(f'buffer_store_dwordx2 {V(o,2)}, v{so}, s[32:35], s60 offen {store_flags}')
    k(f'buffer_store_dwordx2 {V(o+2,2)}, v{so}, s[32:35], s60 offen offset:1024 {store_flags}')
    k.stamp(7)
    k.end(2)
    k.label(lx); k('s_endpgm')
    return k, dict(name=name,grid=256,block=256,lds=5*SLOT,vgpr=k.v.maxused+1,sgpr=70)
```

```python
from kb import *
from k1 import *
NS=8; P=5; NR=6
RING=NS*4096; RES=4*RING
def build_k4(name='k4_ffn2_kernel'):
    k=KB(name)
    k('.text'); k(f'.globl {name}'); k('.p2align 8'); k(f'.type {name},@function'); k.label(name)
    lx=k.lab('exit')
    k.start_stamp()
    k('s_cmp_ge_u32 s2, 256'); k(f's_cbranch_scc1 {lx}')
    k('s_load_dwordx4 s[4:7], s[0:1], 80')
    k('s_load_dwordx2 s[8:9], s[0:1], 96')
    k('s_load_dwordx2 s[10:11], s[0:1], 112')
    lane=k.v.alloc(); wv=k.v.alloc(); t0=k.v.alloc(); t1=k.v.alloc(); t2=k.v.alloc(); t3=k.v.alloc()
    k(f'v_and_b32 v{lane}, 63, v0')
    k(f'v_lshrrev_b32 v{wv}, 6, v0')
    k('s_and_b32 s21, s2, 7'); k('s_lshr_b32 s22, s2, 3')
    k('s_lshr_b32 s23, s22, 3'); k('s_lshl_b32 s21, s21, 2'); k('s_add_u32 s21, s21, s23')
    k('s_and_b32 s22, s22, 7')
    k(f'v_readfirstlane_b32 s20, v{wv}')
    vl=k.v.alloc(); vw=k.v.alloc(); vr=k.v.alloc(); vb=k.v.alloc()
    k(f'v_lshlrev_b32 v{vl}, 4, v{lane}')
    k(f'v_lshrrev_b32 v{t0}, 3, v{lane}')
    k(f'v_lshlrev_b32 v{vw}, 10, v{t0}')
    k(f'v_bfe_u32 v{t1}, v{lane}, 1, 2')
    k(f'v_bfe_u32 v{t2}, v{lane}, 4, 2')
    k(f'v_xor_b32 v{t1}, v{t1}, v{t2}')
    k(f'v_lshl_add_u32 v{vw}, v{t1}, 5, v{vw}')
    k(f'v_and_b32 v{t1}, 1, v{lane}')
    k(f'v_lshl_add_u32 v{vw}, v{t1}, 4, v{vw}')
    k(f'v_lshrrev_b32 v{t0}, 1, v{lane}')
    k(f'v_lshlrev_b32 v{vr}, 8, v{t0}')
    k(f'v_lshl_add_u32 v{vr}, v{t1}, 4, v{vr}')
    k(f'v_lshrrev_b32 v{t0}, 4, v{lane}')
    k(f'v_lshlrev_b32 v{vb}, 3, v{t0}')
    k('s_waitcnt lgkmcnt(0)')
    srd(k,12,4,0,F*D*2)
    srd(k,16,6,0,D*2)
    srd(k,24,8,0,L*D*2)
    srd(k,28,10,WS_H1,L*F*2)
    srd(k,32,10,WS_HB,2<<20)
    b2=[k.v.alloc(2,2) for _ in range(4)]
    k('s_lshl_b32 s36, s22, 7')
    for j in range(4):
        k(f'buffer_load_dwordx2 {V(b2[j],2)}, v{vb}, s[16:19], s36 offen offset:{32*j}')
    k('s_lshr_b32 s37, s21, 1'); k('s_lshl_b32 s37, s37, 17')
    k('s_lshl_b32 s38, s22, 14'); k('s_add_u32 s37, s37, s38')
    k('s_and_b32 s38, s21, 1'); k('s_lshl_b32 s38, s38, 7'); k('s_add_u32 s37, s37, s38')
    k('s_lshl_b32 s38, s20, 5'); k('s_add_u32 s37, s37, s38')
    k('s_lshl_b32 s39, s20, 11'); k(f's_add_u32 s39, s39, {RES}')
    for q in range(2):
        k(f's_add_u32 m0, s39, {q*1024}')
        k(f's_add_u32 s40, s37, {q*32*256}')
        k(f'buffer_load_dwordx4 v{vr}, s[32:35], s40 offen lds')
    k(f's_mul_i32 s41, s21, {56*4096}'); k(f's_mul_i32 s42, s20, {14*4096}'); k('s_add_u32 s41, s41, s42')
    k(f's_mul_i32 s43, s20, {14*32*1024}'); k('s_add_u32 s43, s43, s36')
    k(f's_mul_i32 s44, s20, {RING}')
    fH=[[k.v.alloc(4,4) for _ in range(4)] for _ in range(NR)]
    fW=[[k.v.alloc(4,4) for _ in range(4)] for _ in range(2)]
    def issue(s):
        k(f's_add_u32 s45, s41, {s*4096}')
        for lb in range(4):
            k(f'buffer_load_dwordx4 {V(fH[s%NR][lb],4)}, v{vl}, s[28:31], s45 offen offset:{lb*1024}')
        for q in range(4):
            k(f's_add_u32 m0, s44, {(s%NS)*4096+q*1024}')
            k(f's_add_u32 s46, s43, {(s*32+q*8)*1024}')
            k(f'buffer_load_dwordx4 v{vw}, s[12:15], s46 offen lds')
    for s in range(P): issue(s)
    vW=[k.v.alloc() for _ in range(4)]
    k(f'v_lshrrev_b32 v{t0}, 2, v{lane}')
    k(f'v_lshlrev_b32 v{t1}, 7, v{t0}')
    k(f'v_and_b32 v{t2}, 3, v{lane}')
    k(f'v_lshl_add_u32 v{t1}, v{t2}, 3, v{t1}')
    k(f'v_add_u32 v{t1}, s44, v{t1}')
    k(f'v_bfe_u32 v{t2}, v{lane}, 3, 2')
    for j in range(4):
        k(f'v_xor_b32 v{t3}, {j}, v{t2}')
        k(f'v_lshl_add_u32 v{vW[j]}, v{t3}, 5, v{t1}')
    acc=[[k.v.alloc(4,4) for _ in range(4)] for _ in range(4)]
    for a in sum(acc,[]):
        for r in range(4): k(f'v_mov_b32 v{a+r}, 0')
    def reads(s):
        p=s&1; out=[]
        for j in range(4):
            for rr in range(2):
                out.append(f'ds_read_b64_tr_b16 {V(fW[p][j]+2*rr,2)}, v{vW[j]} offset:{(s%NS)*4096+rr*2048}')
        return out
    k.stamp(1)
    k(f's_waitcnt vmcnt({8*(P-1)})')
    k.stamp(2)
    for l in reads(0): k(l)
    for s in range(14):
        p=s&1
        nxt=[]
        if s<13:
            issued=min(s+P-1,13)
            k(f's_waitcnt vmcnt({8*(issued-(s+1))}) lgkmcnt(0)')
            if s+P<=13: issue(s+P)
            nxt=reads(s+1)
        else:
            k('s_waitcnt vmcnt(0) lgkmcnt(0)')
        if s==1: k.stamp(3)
        if s==7: k.stamp(4)
        n=0
        for j in range(4):
            for lb in range(4):
                k(f'v_mfma_f32_16x16x32_bf16 {V(acc[j][lb],4)}, {V(fW[p][j],4)}, {V(fH[s%NR][lb],4)}, {V(acc[j][lb],4)}')
                if n<len(nxt): k(nxt[n]); n+=1
    k.stamp(5)
    k('s_barrier')
    pa=k.v.alloc(); pr=k.v.alloc()
    k('s_lshl_b32 s45, s20, 12')
    k(f'v_add_u32 v{pa}, s45, v{vl}')
    k('s_lshl_b32 s46, s20, 14')
    k(f'v_add_u32 v{pr}, s46, v{vl}')
    labs=[k.lab(f'w{i}') for i in range(4)]; lj=k.lab('wj')
    for w in range(4):
        k.label(labs[w])
        if w<3:
            k(f's_cmp_eq_u32 s20, {w}'); k(f's_cbranch_scc0 {labs[w+1]}')
        for v in range(4):
            if v==w: continue
            for j in range(4):
                k(f'ds_write_b128 v{pa}, {V(acc[j][v],4)} offset:{v*16384+j*1024}')
        if w!=0:
            for j in range(4):
                for r in range(4): k(f'v_mov_b32 v{acc[j][0]+r}, v{acc[j][w]+r}')
        if w<3: k(f's_branch {lj}')
    k.label(lj)
    k('s_waitcnt lgkmcnt(0)')
    k('s_barrier')
    tmp=[[fH[i][j] for j in range(4)] for i in range(3)]
    ra=[k.v.alloc() for _ in range(3)]
    for i in range(3):
        k(f's_add_u32 s45, s20, {i+1}'); k('s_and_b32 s45, s45, 3'); k('s_lshl_b32 s45, s45, 12')
        k(f'v_add_u32 v{ra[i]}, s45, v{pr}')
        for j in range(4):
            k(f'ds_read_b128 {V(tmp[i][j],4)}, v{ra[i]} offset:{j*1024}')
    res=[fH[3][0]+2*j for j in range(4)]
    rr_=k.v.alloc()
    k(f'v_lshlrev_b32 v{rr_}, 3, v{lane}')
    k(f'v_add_u32 v{rr_}, s39, v{rr_}')
    for j in range(4):
        k(f'ds_read_b64_tr_b16 {V(res[j],2)}, v{rr_} offset:{j*512}')
    so=k.v.alloc()
    k(f'v_and_b32 v{t0}, 15, v{lane}')
    k(f'v_lshlrev_b32 v{so}, 10, v{t0}')
    k(f'v_add_u32 v{so}, v{so}, v{vb}')
    k('s_lshl_b32 s47, s21, 16'); k('s_lshl_b32 s48, s20, 14'); k('s_add_u32 s47, s47, s48'); k('s_add_u32 s47, s47, s36')
    k('s_mov_b32 s42, 0xffff0000')
    k('s_waitcnt lgkmcnt(0)')
    k.stamp(6)
    T=[fH[4][0]+i for i in range(4)]; O=[fH[4][1],fH[4][1]+2,fH[4][2],fH[4][2]+2]
    for j in range(4):
        a=acc[j][0]
        for i in range(3):
            for r in range(4): k(f'v_add_f32 v{a+r}, v{a+r}, v{tmp[i][j]+r}')
        for h in range(2):
            y0=a+2*h; y1=y0+1
            k(f'v_cvt_pk_bf16_f32 v{T[0]}, v{y0}, v{y1}')
            k(f'v_lshlrev_b32 v{y0}, 16, v{T[0]}')
            k(f'v_and_b32 v{y1}, s42, v{T[0]}')
            k(f'v_lshlrev_b32 v{T[1]}, 16, v{b2[j]+h}')
            k(f'v_and_b32 v{T[2]}, s42, v{b2[j]+h}')
            k(f'v_add_f32 v{y0}, v{y0}, v{T[1]}')
            k(f'v_add_f32 v{y1}, v{y1}, v{T[2]}')
            k(f'v_cvt_pk_bf16_f32 v{T[0]}, v{y0}, v{y1}')
            k(f'v_lshlrev_b32 v{y0}, 16, v{T[0]}')
            k(f'v_and_b32 v{y1}, s42, v{T[0]}')
            k(f'v_lshlrev_b32 v{T[1]}, 16, v{res[j]+h}')
            k(f'v_and_b32 v{T[2]}, s42, v{res[j]+h}')
            k(f'v_add_f32 v{y0}, v{y0}, v{T[1]}')
            k(f'v_add_f32 v{y1}, v{y1}, v{T[2]}')
            k(f'v_cvt_pk_bf16_f32 v{O[j]+h}, v{y0}, v{y1}')
        k(f'buffer_store_dwordx2 {V(O[j],2)}, v{so}, s[24:27], s47 offen offset:{32*j}')
    k.stamp(7)
    k.end(3)
    k.label(lx); k('s_endpgm')
    return k, dict(name=name,grid=256,block=256,lds=RES+8192,vgpr=k.v.maxused+1,sgpr=56)
```

```python
import sys
sys.path.insert(0,'lib')
import hazard
class Regs:
    def __init__(s, kind, lo, hi):
        s.kind=kind; s.lo=lo; s.hi=hi; s.next=lo; s.maxused=lo-1; s.names={}
    def alloc(s, n=1, align=1, name=None):
        a=(s.next+align-1)//align*align
        if a+n>s.hi: raise RuntimeError(f'out of {s.kind} regs (want {n} at {a}, limit {s.hi})')
        s.next=a+n; s.maxused=max(s.maxused,a+n-1)
        return a
    def mark(s): return s.next
    def release(s,m): s.next=m
STAMP_ON=[False]
class KB:
    def __init__(s,name,vlo=1,slo=3):
        s.name=name; s.lines=[]; s.v=Regs('v',vlo,256); s.s=Regs('s',slo,100); s.a=Regs('a',0,256); s._l=0
    def __call__(s,t=''):
        for l in str(t).split('\n'):
            l=l.rstrip()
            if l.strip()=='' : continue
            st=l.strip()
            if st.endswith(':') or st.startswith('.'): s.lines.append(st)
            else: s.lines.append('    '+st)
    def c(s,t): s.lines.append('    ; '+t)
    def lab(s,b):
        s._l+=1; return f'{s.name}_{b}{s._l}'
    def label(s,l): s.lines.append(l+':')
    def start_stamp(s):
        if STAMP_ON[0]:
            s('s_mov_b32 s73, s2')
            s('s_memrealtime s[96:97]')
            s('s_memtime s[76:77]')
            for i in range(1,8): s(f's_mov_b32 s{76+2*i}, 0')
    def stamp(s,i):
        if STAMP_ON[0]:
            s('s_waitcnt lgkmcnt(0)')
            s(f's_memtime s[{76+2*i}:{77+2*i}]')
            s('s_waitcnt lgkmcnt(0)')
    def end(s, idx=None):
        if STAMP_ON[0] and idx is not None:
            s('s_mov_b64 exec, -1')
            s('s_waitcnt vmcnt(0) lgkmcnt(0)')
            s('s_memrealtime s[98:99]')
            s('s_memtime s[92:93]')
            s('s_load_dwordx2 s[94:95], s[0:1], 112')
            s('s_waitcnt lgkmcnt(0)')
            s(f's_add_u32 s94, s94, {hex((24<<20)+idx*(1<<20))}')
            s('s_addc_u32 s95, s95, 0')
            s('v_lshrrev_b32 v1, 6, v0')
            s('v_and_b32 v2, 63, v0')
            s('v_lshlrev_b32 v1, 6, v1')
            s('s_lshl_b32 s75, s73, 9')
            s('v_add_u32 v1, s75, v1')
            s('v_mov_b32 v4, s96'); s('v_mov_b32 v5, s97'); s('v_mov_b32 v6, s98'); s('v_mov_b32 v7, s99')
            for i in range(1,8):
                s(f's_sub_u32 s{76+2*i}, s{76+2*i}, s76')
            s('s_sub_u32 s92, s92, s76')
            for i in range(1,8): s(f'v_mov_b32 v{7+i}, s{76+2*i}')
            s('v_mov_b32 v15, s92')
            s('v_cmp_eq_u32 vcc, 0, v2')
            s('s_and_saveexec_b64 s[92:93], vcc')
            s('global_store_dwordx4 v1, v[4:7], s[94:95]')
            s('global_store_dwordx4 v1, v[8:11], s[94:95] offset:16')
            s('global_store_dwordx4 v1, v[12:15], s[94:95] offset:32')
            s('s_getreg_b32 s75, hwreg(20, 0, 32)')
            s('s_getreg_b32 s74, hwreg(4, 0, 32)')
            s('v_mov_b32 v4, s75'); s('v_mov_b32 v5, s74')
            s('global_store_dwordx2 v1, v[4:5], s[94:95] offset:48')
        s('s_endpgm')
    def finish(s,verbose=False):
        return hazard.fix(s.lines,verbose)
def V(a,n=1): return f'v{a}' if n==1 else f'v[{a}:{a+n-1}]'
def S(a,n=1): return f's{a}' if n==1 else f's[{a}:{a+n-1}]'
def Ac(a,n=1): return f'a{a}' if n==1 else f'a[{a}:{a+n-1}]'
def desc(name,vgpr,sgpr,agpr=0):
    if STAMP_ON[0]: sgpr=102; vgpr=max(vgpr,16)
    acc=(vgpr+3)//4*4
    if acc<4: acc=4
    nfv=acc+agpr if agpr else vgpr
    return f'''.p2align 6
.amdhsa_kernel {name}
  .amdhsa_next_free_vgpr {nfv}
  .amdhsa_next_free_sgpr {sgpr}
  .amdhsa_accum_offset {acc}
  .amdhsa_group_segment_fixed_size 0
  .amdhsa_kernarg_size 120
  .amdhsa_user_sgpr_count 2
  .amdhsa_user_sgpr_kernarg_segment_ptr 1
  .amdhsa_system_sgpr_workgroup_id_x 1
  .amdhsa_float_denorm_mode_32 3
  .amdhsa_float_denorm_mode_16_64 3
  .amdhsa_ieee_mode 0
  .amdhsa_dx10_clamp 0
.end_amdhsa_kernel
'''
```

```python
from common import *
CHB=17088; LP=0; LO=512; XO=4608; EO=8704; OO=12864
RB=114688
LDS_TOTAL=163840
POLL_LIMIT=40000
S_WAVE=20; S_PI=21; S_C=22; S_HD=23
S_MT=64; S_NT=65; S_PAR=66; S_LT=67; S_DT=68
SRD_LG=8; SRD_XG=12; SRD_KR=16; SRD_HB=32; SRD_W1=36; SRD_CS=40; SRD_H1=44; SRD_W2=48; SRD_B2=52; SRD_OUT=56; SRD_SY=60
def sr4(a): return f's[{a}:{a+3}]'

def poll(k, voff, nlanes, target, lane, tmp):
    lp=k.lab('poll'); ld=k.lab('polld')
    k(f'v_cmp_gt_u32 vcc, {nlanes}, v{lane}')
    k('s_and_saveexec_b64 s[70:71], vcc')
    k('s_mov_b32 s69, 0')
    k.label(lp)
    k(f'buffer_load_dword v{tmp}, v{voff}, {sr4(SRD_SY)}, 0 offen sc1')
    k('s_waitcnt vmcnt(0)')
    k(f'v_cmp_gt_u32 vcc, {target}, v{tmp}')
    k(f's_cbranch_vccz {ld}')
    k('s_add_u32 s69, s69, 1')
    k(f's_cmp_lt_u32 s69, {POLL_LIMIT}')
    k(f's_cbranch_scc1 {lp}')
    k.label(ld)
    k('s_mov_b64 exec, s[70:71]')

def arrive(k, voff_reg, lane, tmp):
    k(f'v_mov_b32 v{tmp}, 1')
    k(f'v_cmp_eq_u32 vcc, 0, v{lane}')
    k('s_and_saveexec_b64 s[70:71], vcc')
    k(f'buffer_atomic_add v{tmp}, v{voff_reg}, {sr4(SRD_SY)}, 0 offen')
    k('s_mov_b64 exec, s[70:71]')

def build_kp(name='kp_main_kernel', mimic=True, W2_EARLY=32, W1_EVERY=6, PD=4, stamps=None, mimic_out=True, hsc='sc1', gsc='sc1', nostats=False, perturb=0.0):
    k=KB(name)
    stamps=stamps or ['b_setup','b_loop0','b_exch','b_arrive','c_bar','c_main','c_arrive']
    def ST(n):
        if n in stamps: k.stamp(stamps.index(n)+1)
    k('.text'); k(f'.globl {name}'); k('.p2align 8'); k(f'.type {name},@function'); k.label(name)
    lx=k.lab('exit')
    k.start_stamp()
    k('s_cmp_ge_u32 s2, 256'); k(f's_cbranch_scc1 {lx}')
    k('s_load_dwordx2 s[4:5], s[0:1], 48')
    k('s_load_dwordx2 s[6:7], s[0:1], 112')
    k('s_load_dwordx2 s[24:25], s[0:1], 64')
    k('s_load_dwordx4 s[28:31], s[0:1], 88')
    k('s_load_dwordx2 s[40:41], s[0:1], 72')
    lane=k.v.alloc(); vl=k.v.alloc()
    base_mark=k.v.mark()
    wv=k.v.alloc(); t0=k.v.alloc(); t1=k.v.alloc(); t2=k.v.alloc(); t3=k.v.alloc()
    k(f'v_and_b32 v{lane}, 63, v0')
    k(f'v_lshrrev_b32 v{wv}, 6, v0')
    k(f'v_lshlrev_b32 v{vl}, 4, v{lane}')
    k('s_and_b32 s26, s2, 7'); k('s_lshr_b32 s27, s2, 3')
    k(f's_lshl_b32 s{S_PI}, s26, 5'); k(f's_add_u32 s{S_PI}, s{S_PI}, s27')
    k(f'v_readfirstlane_b32 s{S_WAVE}, v{wv}')
    k(f's_lshr_b32 s{S_MT}, s27, 4'); k('s_lshl_b32 s69, s26, 1'); k(f's_add_u32 s{S_MT}, s{S_MT}, s69')
    k(f's_and_b32 s{S_NT}, s27, 15'); k(f's_and_b32 s{S_PAR}, s27, 1')
    k(f's_lshr_b32 s{S_LT}, s27, 3'); k('s_lshl_b32 s69, s26, 2'); k(f's_add_u32 s{S_LT}, s{S_LT}, s69')
    k(f's_and_b32 s{S_DT}, s27, 7')
    k('s_lshl_b32 s72, s21, 1')
    vlx=k.v.alloc(); vk=k.v.alloc()
    k(f'v_lshrrev_b32 v{t0}, 1, v0')
    k(f'v_lshlrev_b32 v{vlx}, 13, v{t0}')
    k(f'v_and_b32 v{t1}, 1, v0')
    k(f'v_lshl_add_u32 v{vlx}, v{t1}, 4, v{vlx}')
    k(f'v_lshrrev_b32 v{t2}, 7, v0')
    k(f'v_mul_u32_u24 v{vk}, {KLD}, v{t2}')
    k(f'v_and_b32 v{t0}, 127, v0')
    k(f'v_lshl_add_u32 v{vk}, v{t0}, 4, v{vk}')
    k(f's_lshr_b32 s{S_C}, s{S_WAVE}, 1')
    k(f's_and_b32 s{S_HD}, s{S_WAVE}, 1')
    k('s_waitcnt lgkmcnt(0)')
    k('s_lshl_b32 s27, s21, 2')
    k('s_load_dword s3, s[4:5], s27')
    srd(k,SRD_LG,6,WS_LG,2<<20)
    srd(k,SRD_KR,6,WS_KR,D*KLD+64)
    srd(k,SRD_XG,6,WS_XG,2<<20)
    vm=VM(k)
    k('s_lshl_b32 s26, s72, 4')
    k(f's_add_u32 s27, s26, {128*8192}')
    ld=[k.v.alloc(4,4) for _ in range(4)]
    vm.issue(f'buffer_load_dwordx4 {V(ld[0],4)}, v{vlx}, {sr4(SRD_LG)}, s26 offen','L')
    vm.issue(f'buffer_load_dwordx4 {V(ld[1],4)}, v{vlx}, {sr4(SRD_LG)}, s27 offen','L')
    k(f's_mul_i32 s69, s72, {KLD}')
    kk=[k.v.alloc(4,4) for _ in range(2)]; kn=[k.v.alloc() for _ in range(2)]
    for j in range(2):
        vm.issue(f'buffer_load_dwordx4 {V(kk[j],4)}, v{vk}, {sr4(SRD_KR)}, s69 offen offset:{j*2048}',f'K{j}')
        vm.issue(f'buffer_load_dword v{kn[j]}, v{vk}, {sr4(SRD_KR)}, s69 offen offset:{j*2048+16}',f'K{j}')
    vm.issue(f'buffer_load_dwordx4 {V(ld[2],4)}, v{vlx}, {sr4(SRD_XG)}, s26 offen','X')
    vm.issue(f'buffer_load_dwordx4 {V(ld[3],4)}, v{vlx}, {sr4(SRD_XG)}, s27 offen','X')
    srd(k,SRD_HB,6,WS_HB,2<<20)
    srd(k,SRD_W1,24,0,D*F*2)
    srd(k,SRD_CS,40,0,F*2)
    srd(k,SRD_H1,6,WS_H1,L*F*2)
    srd(k,SRD_W2,6,WS_W2F,F*D*2)
    srd(k,SRD_B2,28,0,D*2)
    srd(k,SRD_OUT,30,0,L*D*2)
    srd(k,SRD_SY,6,WS_SYNC,8192)
    vw1=[k.v.alloc() for _ in range(7)]
    k('s_mov_b32 s24, 4682')
    for b in range(7):
        k(f'v_add_u32 v{t0}, {64*b}, v{lane}')
        k(f'v_mul_u32_u24 v{t1}, s24, v{t0}')
        k(f'v_lshrrev_b32 v{t1}, 16, v{t1}')
        k(f'v_mul_u32_u24 v{t3}, 14, v{t1}')
        k(f'v_sub_u32 v{t3}, v{t0}, v{t3}')
        k(f'v_mul_u32_u24 v{t1}, {F*2}, v{t1}')
        k(f'v_lshl_add_u32 v{vw1[b]}, v{t3}, 4, v{t1}')
    k(f's_mul_i32 s24, s{S_WAVE}, 7168')
    k(f's_mul_i32 s25, s{S_WAVE}, {32*F*2}'); k(f's_mul_i32 s28, s{S_NT}, 224'); k('s_add_u32 s25, s25, s28')
    w1q=[]
    for i in range(4):
        for b in range(7):
            w1q.append((i,b))
    def w1dma(n):
        i,b=w1q[n]
        k(f's_add_u32 m0, s24, {i*28672+b*1024}')
        k(f's_add_u32 s28, s25, {i*4*32*F*2}')
        vm.issue(f'buffer_load_dwordx4 v{vw1[b]}, {sr4(SRD_W1)}, s28 offen lds','W1')
    wl=k.v.alloc(); wk=k.v.alloc(); wz=k.v.alloc()
    k(f'v_and_b32 v{t1}, 1, v0')
    k(f'v_mul_u32_u24 v{wl}, {CHB}, v{t1}')
    k(f'v_lshrrev_b32 v{t0}, 1, v0')
    k(f'v_lshl_add_u32 v{wl}, v{t0}, 4, v{wl}')
    k(f'v_add_u32 v{wl}, {RB}, v{wl}')
    k(f'v_mul_u32_u24 v{wk}, {CHB}, v{t2}')
    k(f'v_and_b32 v{t0}, 127, v0')
    k(f'v_lshl_add_u32 v{wk}, v{t0}, 4, v{wk}')
    k(f'v_add_u32 v{wk}, {RB}, v{wk}')
    z=k.v.alloc(4,4)
    for r in range(4): k(f'v_mov_b32 v{z+r}, 0')
    k(f'v_bfe_u32 v{t0}, v0, 5, 1')
    k(f'v_mul_u32_u24 v{wz}, {CHB}, v{t0}')
    k(f'v_and_b32 v{t0}, 31, v0')
    k(f'v_lshl_add_u32 v{wz}, v{t0}, 4, v{wz}')
    k(f'v_add_u32 v{wz}, {RB}, v{wz}')
    k(f'v_cmp_gt_u32 vcc, 64, v0')
    k('s_and_saveexec_b64 s[70:71], vcc')
    l1=k.lab('z1'); k(f's_cbranch_execz {l1}')
    k(f'ds_write_b128 v{wz}, {V(z,4)} offset:{LP}')
    k.label(l1); k('s_mov_b64 exec, s[70:71]')
    k(f'v_bfe_u32 v{t0}, v0, 2, 1')
    k(f'v_mul_u32_u24 v{wz}, {CHB}, v{t0}')
    k(f'v_bfe_u32 v{t0}, v0, 1, 1')
    k(f'v_mul_u32_u24 v{t0}, {OO-EO}, v{t0}')
    k(f'v_and_b32 v{t1}, 1, v0')
    k(f'v_lshlrev_b32 v{t1}, 4, v{t1}')
    k(f'v_add3_u32 v{wz}, v{wz}, v{t0}, v{t1}')
    k(f'v_add_u32 v{wz}, {RB}, v{wz}')
    k(f'v_lshrrev_b32 v{t0}, 3, v0')
    k(f'v_cmp_eq_u32 vcc, 8, v{t0}')
    k('s_and_saveexec_b64 s[70:71], vcc')
    l2=k.lab('z2'); k(f's_cbranch_execz {l2}')
    k(f'ds_write_b128 v{wz}, {V(z,4)} offset:{EO+4096}')
    k.label(l2); k('s_mov_b64 exec, s[70:71]')
    vB=k.v.alloc(); vA=[k.v.alloc() for _ in range(4)]
    k(f's_mul_i32 s30, s{S_C}, {CHB}'); k(f's_add_u32 s30, s30, {RB}')
    k(f's_lshl_b32 s31, s{S_HD}, 8')
    k(f'v_and_b32 v{t0}, 15, v{lane}')
    k(f'v_lshrrev_b32 v{t1}, 4, v{lane}')
    k(f'v_lshlrev_b32 v{vB}, 5, v{t0}')
    k(f'v_lshl_add_u32 v{vB}, v{t1}, 4, v{vB}')
    k(f's_sub_u32 s26, s30, s31')
    k(f's_add_u32 s27, s26, {LO-32-192}')
    k(f'v_add_u32 v{vB}, s27, v{vB}')
    k(f'v_sub_u32 v{t2}, 2031, v{t0}')
    k(f'v_lshrrev_b32 v{t2}, 1, v{t2}')
    k(f'v_lshlrev_b32 v{t2}, 2, v{t2}')
    k(f'v_lshl_add_u32 v{t2}, v{t1}, 4, v{t2}')
    k(f'v_and_b32 v{t0}, 1, v{t0}')
    k(f'v_mul_u32_u24 v{t0}, {OO-EO}, v{t0}')
    k(f'v_sub_u32 v{t2}, v{t2}, v{t0}')
    k(f's_add_u32 s27, s26, {OO-192-3584}')
    for j in range(4):
        k(f's_add_u32 s29, s27, {1024*j}')
        k(f'v_add_u32 v{vA[j]}, s29, v{t2}')
    ST('b_setup')
    vm.wait('L')
    ST('b_L')
    k(f'ds_write_b128 v{wl}, {V(ld[0],4)} offset:{LO}')
    k(f'ds_write_b128 v{wl}, {V(ld[1],4)} offset:{LO+2048}')
    od=k.v.alloc(4,4)
    for j in range(2):
        vm.wait(f'K{j}')
        k(f'ds_write_b128 v{wk}, {V(kk[j],4)} offset:{EO+j*2048}')
        for r in range(3):
            k(f'v_alignbyte_b32 v{od+r}, v{kk[j]+r+1}, v{kk[j]+r}, 2')
        k(f'v_alignbyte_b32 v{od+3}, v{kn[j]}, v{kk[j]+3}, 2')
        k(f'ds_write_b128 v{wk}, {V(od,4)} offset:{OO+j*2048}')
    vm.wait('X')
    k(f'ds_write_b128 v{wl}, {V(ld[2],4)} offset:{XO}')
    k(f'ds_write_b128 v{wl}, {V(ld[3],4)} offset:{XO+2048}')
    acc=[k.v.alloc(4,4) for _ in range(8)]
    for a in acc:
        for r in range(4): k(f'v_mov_b32 v{a+r}, 0')
    fB=[[k.v.alloc(4,4) for _ in range(8)] for _ in range(2)]
    fA=[[k.v.alloc(4,4) for _ in range(8)] for _ in range(2)]
    k('s_waitcnt lgkmcnt(0)')
    k('s_barrier')
    def loads(i):
        p=i&1; out=[]
        for s in range(8):
            out.append(f'ds_read_b128 {V(fB[p][s],4)}, v{vB} offset:{64*(3-i)+512*s}')
        al=[]
        for s in range(8):
            j=(7-s)//2; hi=0 if (7-2*j)==s else 128
            o=16*(3-i)+hi
            al.append(f'ds_read2_b32 {V(fA[p][s],2)}, v{vA[j]} offset0:{o} offset1:{o+1}')
            al.append(f'ds_read2_b32 {V(fA[p][s]+2,2)}, v{vA[j]} offset0:{o+2} offset1:{o+3}')
        return al[:2]+out+al[2:]
    for l in loads(0): k(l)
    nw1=0
    for _ in range(2): w1dma(nw1); nw1+=1
    k('s_waitcnt lgkmcnt(0)')
    ST('b_loop0')
    cnt=0
    for i in range(4):
        p=i&1
        nxt=loads(i+1) if i<3 else []
        n=0
        for s in range(8):
            for tp in range(8-s):
                k(f'v_mfma_f32_16x16x32_bf16 {V(acc[s+tp],4)}, {V(fA[p][s],4)}, {V(fB[p][tp],4)}, {V(acc[s+tp],4)}')
                if n<len(nxt): k(nxt[n]); n+=1
                cnt+=1
                if cnt%W1_EVERY==0 and nw1<28: w1dma(nw1); nw1+=1
        if i<3: k('s_waitcnt lgkmcnt(0)')
    while nw1<28: w1dma(nw1); nw1+=1
    ST('b_loop1')
    k('s_barrier')
    pa=k.v.alloc(); pr=k.v.alloc()
    k(f's_lshl_b32 s26, s{S_HD}, 12')
    k(f's_add_u32 s27, s30, {EO}')
    k(f's_add_u32 s28, s27, s26')
    k(f's_xor_b32 s26, s26, 4096')
    k(f's_add_u32 s29, s27, s26')
    k(f'v_add_u32 v{pr}, s29, v{vl}')
    k(f'v_add_u32 v{pa}, s28, v{vl}')
    lA=k.lab('snd1'); lB=k.lab('sndx')
    k(f's_cmp_eq_u32 s{S_HD}, 0'); k(f's_cbranch_scc0 {lA}')
    for j in range(4): k(f'ds_write_b128 v{pa}, {V(acc[4+j],4)} offset:{j*1024}')
    k(f's_branch {lB}')
    k.label(lA)
    for j in range(4): k(f'ds_write_b128 v{pa}, {V(acc[j],4)} offset:{j*1024}')
    k.label(lB)
    ea=k.v.alloc(); so=k.v.alloc()
    k(f'v_and_b32 v{t0}, 15, v{lane}')
    k(f'v_lshrrev_b32 v{t1}, 4, v{lane}')
    k(f'v_lshlrev_b32 v{ea}, 5, v{t0}')
    k(f'v_lshl_add_u32 v{ea}, v{t1}, 3, v{ea}')
    k(f'v_add_u32 v{ea}, s30, v{ea}')
    k(f'v_lshrrev_b32 v{t2}, 3, v{t0}')
    k(f'v_lshlrev_b32 v{so}, 17, v{t2}')
    k(f'v_and_b32 v{t0}, 7, v{t0}')
    k(f'v_lshl_add_u32 v{so}, v{t0}, 5, v{so}')
    k(f'v_lshl_add_u32 v{so}, v{t1}, 3, v{so}')
    k(f's_lshl_b32 s29, s{S_C}, 4'); k('s_lshr_b32 s3, s3, s29'); k('s_lshl_b32 s3, s3, 16')
    k(f's_add_u32 s72, s72, s{S_C}'); k('s_lshl_b32 s72, s72, 8')
    k('s_mov_b32 s26, 0xffff0000')
    k('s_waitcnt lgkmcnt(0)')
    k('s_barrier')
    ST('b_exch')
    part=[fB[0][j] for j in range(4)]
    lnr=[fB[0][4+j//2]+2*(j%2) for j in range(4)]
    xr=[fB[0][6+j//2]+2*(j%2) for j in range(4)]
    T=[fA[0][0]+i for i in range(4)]+[fA[0][1]+i for i in range(4)]
    def epi(keep):
        for j in range(4):
            k(f'ds_read_b128 {V(part[j],4)}, v{pr} offset:{j*1024}')
        for j in range(4):
            t=keep+j
            k(f'ds_read_b64 {V(lnr[j],2)}, v{ea} offset:{LO+512*t}')
            k(f'ds_read_b64 {V(xr[j],2)}, v{ea} offset:{XO+512*t}')
        k('s_waitcnt lgkmcnt(0)')
        for j in range(4):
            t=keep+j; a=acc[t]
            for r in range(4): k(f'v_add_f32 v{a+r}, v{a+r}, v{part[j]+r}')
            for h in range(2):
                y0=a+2*h; y1=y0+1; l=lnr[j]+h; x=xr[j]+h
                a0,a1,b0,b1=T[0],T[1],T[2],T[3]
                k(f'v_lshlrev_b32 v{a0}, 16, v{l}')
                k(f'v_and_b32 v{a1}, s26, v{l}')
                if mimic:
                    k(f'v_mul_f32 v{a0}, s3, v{a0}')
                    k(f'v_mul_f32 v{a1}, s3, v{a1}')
                    k(f'v_cvt_pk_bf16_f32 v{b0}, v{a0}, v{a1}')
                    k(f'v_cvt_pk_bf16_f32 v{b1}, v{y0}, v{y1}')
                    k(f'v_lshlrev_b32 v{a0}, 16, v{b0}')
                    k(f'v_and_b32 v{a1}, s26, v{b0}')
                    k(f'v_lshlrev_b32 v{y0}, 16, v{b1}')
                    k(f'v_and_b32 v{y1}, s26, v{b1}')
                    k(f'v_add_f32 v{a0}, v{a0}, v{y0}')
                    k(f'v_add_f32 v{a1}, v{a1}, v{y1}')
                    k(f'v_cvt_pk_bf16_f32 v{b0}, v{a0}, v{a1}')
                    k(f'v_lshlrev_b32 v{a0}, 16, v{b0}')
                    k(f'v_and_b32 v{a1}, s26, v{b0}')
                else:
                    k(f'v_fma_f32 v{a0}, v{a0}, s3, v{y0}')
                    k(f'v_fma_f32 v{a1}, v{a1}, s3, v{y1}')
                k(f'v_lshlrev_b32 v{b0}, 16, v{x}')
                k(f'v_and_b32 v{b1}, s26, v{x}')
                k(f'v_add_f32 v{a0}, v{a0}, v{b0}')
                k(f'v_add_f32 v{a1}, v{a1}, v{b1}')
                k(f'v_cvt_pk_bf16_f32 v{T[4+(j&1)*2+h]}, v{a0}, v{a1}')
            k(f's_add_u32 s27, s72, {t*262144}')
            k(f'buffer_store_dwordx2 {V(T[4+(j&1)*2],2)}, v{so}, {sr4(SRD_HB)}, s27 offen sc1')
    lC=k.lab('epi1'); lD=k.lab('epid')
    k(f's_cmp_eq_u32 s{S_HD}, 0'); k(f's_cbranch_scc0 {lC}')
    epi(0); k(f's_branch {lD}')
    k.label(lC); epi(4)
    k.label(lD)
    k.v.release(base_mark)
    t0=k.v.alloc(); t1=k.v.alloc(); t2=k.v.alloc(); t3=k.v.alloc(); sv=k.v.alloc(); pv=k.v.alloc()
    k('s_lshr_b32 s26, s2, 3'); k('s_and_b32 s26, s26, 15'); k('s_lshl_b32 s26, s26, 7')
    k(f'v_mov_b32 v{sv}, s26')
    k(f'v_lshlrev_b32 v{pv}, 7, v{lane}')
    ST('b_epi')
    k('s_waitcnt vmcnt(0)')
    ST('b_ack')
    k('s_barrier')
    lw=k.lab('na1')
    k(f's_cmp_eq_u32 s{S_WAVE}, 0'); k(f's_cbranch_scc0 {lw}')
    arrive(k,sv,lane,t0)
    k.label(lw)
    ST('b_arrive')
    vm=VM(k)
    cs=[k.v.alloc(4,4) for _ in range(7)]; b1=[k.v.alloc(4,4) for _ in range(7)]
    vq=k.v.alloc()
    k(f'v_lshrrev_b32 v{t0}, 4, v{lane}')
    k(f'v_lshlrev_b32 v{vq}, 3, v{t0}')
    k(f's_mul_i32 s24, s{S_NT}, 224')
    k(f's_lshl_b32 s25, s{S_PAR}, 5')
    k('s_add_u32 s26, s24, s25')
    k(f's_mul_i32 s27, s{S_PAR}, 192'); k('s_sub_u32 s27, 192, s27'); k('s_add_u32 s27, s27, s24')
    for j in range(7):
        if j<6: vm.issue(f'buffer_load_dwordx2 {V(b1[j]+2,2)}, v{vq}, {sr4(SRD_CS)}, s26 offen offset:{32*j}','b1')
        else: vm.issue(f'buffer_load_dwordx2 {V(b1[j]+2,2)}, v{vq}, {sr4(SRD_CS)}, s27 offen','b1')
    lcp=k.lab('cp'); lpc=k.lab('pc')
    cpv=k.v.alloc(4,4); cpa=k.v.alloc()
    k(f's_cmp_eq_u32 s{S_WAVE}, 1'); k(f's_cbranch_scc0 {lcp}')
    k('s_getpc_b64 s[28:29]'); k.label(lpc)
    k('s_lshr_b32 s24, s2, 3'); k('s_lshl_b32 s24, s24, 10')
    k(f'v_add_u32 v{cpa}, s24, v{vl}')
    k(f's_mov_b32 s24, {name}_codeend-{lpc}-16')
    k(f'v_min_u32 v{cpa}, s24, v{cpa}')
    k(f'global_load_dwordx4 {V(cpv,4)}, v{cpa}, s[28:29]')
    k.label(lcp)
    k(f's_mul_i32 s30, s{S_DT}, {56*4096}'); k(f's_mul_i32 s31, s{S_WAVE}, {14*4096}'); k('s_add_u32 s30, s30, s31')
    nw2=[0]
    def w2load():
        n=nw2[0]; nw2[0]+=1
        kk_,j=n//4,n%4
        if j==0: k(f's_add_u32 s31, s30, {kk_*4096}')
        vm.issue(f'buffer_load_dwordx4 {Ac(4*n,4)}, v{vl}, {sr4(SRD_W2)}, s31 offen offset:{j*1024}','W2')
    vh=[k.v.alloc(),k.v.alloc()]
    for q in range(2):
        k(f'v_lshrrev_b32 v{t0}, 4, v{lane}')
        k(f'v_add_u32 v{t1}, {4*q}, v{t0}')
        k(f'v_bfe_u32 v{t2}, v{lane}, 1, 3')
        k(f'v_xor_b32 v{t1}, v{t1}, v{t2}')
        k(f'v_lshlrev_b32 v{t1}, 5, v{t1}')
        k(f'v_lshl_add_u32 v{t1}, v{t0}, 8, v{t1}')
        k(f'v_and_b32 v{t2}, 1, v{lane}')
        k(f'v_lshl_add_u32 v{vh[q]}, v{t2}, 4, v{t1}')
    k(f's_lshl_b32 s24, s{S_MT}, 17')
    k(f's_lshl_b32 s25, s{S_WAVE}, 12')
    k('s_add_u32 s24, s24, s25')
    k(f's_add_u32 s25, s25, {RB}')
    def dma(ch):
        for q in range(4): dma1(ch,q)
    def dma1(ch,q):
        sb=(ch%3)*16384
        if q==0:
            k(f's_add_u32 m0, s25, {sb}')
            k(f's_add_u32 s27, s24, {ch*16384}')
        vm.issue(f'buffer_load_dwordx4 v{vh[q&1]}, {sr4(SRD_HB)}, s27 offen offset:{q*1024} {hsc} lds',f'h{ch}')
    vH=[k.v.alloc() for _ in range(2)]
    vWa=[k.v.alloc() for _ in range(2)]; vWb=[k.v.alloc() for _ in range(2)]
    k(f'v_lshrrev_b32 v{t0}, 2, v{lane}')
    k(f'v_and_b32 v{t1}, 7, v{t0}')
    k(f'v_and_b32 v{t3}, 3, v{lane}')
    k(f'v_lshlrev_b32 v{t3}, 3, v{t3}')
    k(f's_lshl_b32 s26, s{S_WAVE}, 1')
    for c in range(2):
        k(f's_add_u32 s27, s26, {c}')
        k(f'v_xor_b32 v{t2}, s27, v{t1}')
        k(f'v_lshlrev_b32 v{t2}, 5, v{t2}')
        k(f'v_lshl_add_u32 v{t2}, v{t0}, 8, v{t2}')
        k(f'v_add_u32 v{t2}, v{t2}, v{t3}')
        k(f'v_add_u32 v{vH[c]}, {RB}, v{t2}')
    k(f'v_mul_u32_u24 v{t2}, 224, v{t0}')
    k(f'v_add_u32 v{t2}, v{t2}, v{t3}')
    k(f's_lshl_b32 s26, s{S_PAR}, 5')
    k(f'v_add_u32 v{vWa[0]}, s26, v{t2}')
    k(f's_mul_i32 s26, s{S_PAR}, 192'); k(f's_sub_u32 s26, 192, s26')
    k(f'v_add_u32 v{vWb[0]}, s26, v{t2}')
    k(f'v_add_u32 v{vWa[1]}, {8*7168}, v{vWa[0]}')
    k(f'v_add_u32 v{vWb[1]}, {8*7168}, v{vWb[0]}')
    acc=[[k.v.alloc(4,4) for _ in range(2)] for _ in range(7)]
    ssum=[k.v.alloc(4,4) for _ in range(2)]; ssq=[k.v.alloc(4,4) for _ in range(2)]
    ones=k.v.alloc(4,4)
    for a in sum(acc,[])+ssum+ssq:
        for r in range(4): k(f'v_mov_b32 v{a+r}, 0')
    k('s_mov_b32 s26, 0x3f803f80')
    for r in range(4): k(f'v_mov_b32 v{ones+r}, s26')
    fH=[[k.v.alloc(4,4) for _ in range(2)] for _ in range(2)]
    fW=[[k.v.alloc(4,4) for _ in range(7)] for _ in range(2)]
    def readsW(s):
        p=s&1; st=s//8; sb=(s%8)*7168
        return [f'ds_read_b128 {V(fW[p][j],4)}, v{vF[st]} offset:{sb+j*1024}' for j in range(7)]
    def readsH(s):
        ch=s>>1; ks=s&1; sb=(ch%3)*16384; p=s&1; out=[]
        for c in range(2):
            for rr in range(2):
                out.append(f'ds_read_b64_tr_b16 {V(fH[p][c]+2*rr,2)}, v{vH[c]} offset:{sb+(32*ks+16*rr)*256}')
        return out
    vT=[k.v.alloc() for _ in range(2)]
    vF=[k.v.alloc() for _ in range(2)]
    k(f's_mul_i32 s26, s{S_WAVE}, 7168')
    k(f'v_add_u32 v{vT[0]}, s26, v{vWa[0]}')
    k(f'v_add_u32 v{vT[1]}, s26, v{vWb[0]}')
    k(f'v_add_u32 v{vWa[0]}, s26, v{vl}')
    k(f'v_mov_b32 v{vF[0]}, v{vl}')
    k(f'v_add_u32 v{vF[1]}, {8*7168}, v{vl}')
    for j in range(7):
        for r in range(4): k(f'v_mov_b32 v{cs[j]+r}, 0')
    def trblock(i):
        p=i&1; out=[]
        for j in range(7):
            for rr in range(2):
                if j<6: out.append(f'ds_read_b64_tr_b16 {V(fW[p][j]+2*rr,2)}, v{vT[0]} offset:{i*28672%65536 if False else 0}'.replace('offset:0',f'offset:{rr*3584+32*j}'))
                else: out.append(f'ds_read_b64_tr_b16 {V(fW[p][j]+2*rr,2)}, v{vT[1]} offset:{rr*3584}')
        return out
    for i in range(4):
        p=i&1
        for l in trblock(i): k(l)
        if i<3:
            pass
        for _ in range(4):
            if nw2[0]<W2_EARLY: w2load()
        k('s_waitcnt lgkmcnt(0)')
        for j in range(7):
            k(f'v_mfma_f32_16x16x32_bf16 {V(cs[j],4)}, {V(fW[p][j],4)}, {V(ones,4)}, {V(cs[j],4)}')
            k(f'ds_write_b128 v{vWa[0]}, {V(fW[p][j],4)} offset:{j*1024}')
            if j%2==1 and nw2[0]<W2_EARLY: w2load()
        if i<3:
            k(f'v_add_u32 v{vT[0]}, 28672, v{vT[0]}')
            k(f'v_add_u32 v{vT[1]}, 28672, v{vT[1]}')
            k(f'v_add_u32 v{vWa[0]}, 28672, v{vWa[0]}')
    k(f's_mul_i32 s26, s{S_WAVE}, 7168'); k(f's_add_u32 s26, s26, {RB}')
    k(f'v_add_u32 v{vT[0]}, s26, v{vl}')
    for j in range(7):
        k(f'ds_write_b128 v{vT[0]}, {V(cs[j],4)} offset:{j*1024}')
    while nw2[0]<W2_EARLY: w2load()
    k(f'v_and_b32 v{vT[1]}, 48, v{lane}')
    k(f'v_lshlrev_b32 v{vT[1]}, 4, v{vT[1]}')
    k(f'v_add_u32 v{vT[1]}, {RB}, v{vT[1]}')
    k('s_waitcnt lgkmcnt(0)')
    k('s_barrier')
    for w_ in range(4):
        dst=cs if w_==0 else fW[w_&1]
        for j in range(7):
            k(f'ds_read_b128 {V(dst[j],4)}, v{vT[1]} offset:{w_*7168+j*1024}')
        if w_>0:
            k('s_waitcnt lgkmcnt(0)')
            for j in range(7):
                for h in range(2): k(f'v_pk_add_f32 {V(cs[j]+2*h,2)}, {V(cs[j]+2*h,2)}, {V(dst[j]+2*h,2)}')
    for l in readsW(0): k(l)
    vm.wait('b1')
    for j in range(7):
        k(f'v_lshlrev_b32 v{b1[j]}, 16, v{b1[j]+2}')
        k(f'v_and_b32 v{b1[j]+1}, 0xffff0000, v{b1[j]+2}')
        k(f'v_lshlrev_b32 v{b1[j]+2}, 16, v{b1[j]+3}')
        k(f'v_and_b32 v{b1[j]+3}, 0xffff0000, v{b1[j]+3}')
    ST('c_setup')
    lw=k.lab('np1')
    k(f's_cmp_eq_u32 s{S_WAVE}, 0'); k(f's_cbranch_scc0 {lw}')
    poll(k,pv,16,16,lane,t0)
    k.label(lw)
    k('s_waitcnt vmcnt(0)')
    k('s_barrier')
    ST('c_bar')
    vm=VM(k)
    dma(0); dma(1)
    rs_l=RB+2*16384
    vm.wait('h0')
    k('s_barrier')
    ST('c_h0')
    for l in readsH(0): k(l)
    dma(2)
    vr=k.v.alloc()
    k(f'v_lshrrev_b32 v{t0}, 1, v{lane}')
    k(f'v_lshlrev_b32 v{vr}, 8, v{t0}')
    k(f'v_and_b32 v{t1}, 1, v{lane}')
    k(f'v_lshl_add_u32 v{vr}, v{t1}, 4, v{vr}')
    k(f's_lshl_b32 s4, s{S_MT}, 17')
    k(f's_lshl_b32 s5, s{S_DT}, 14'); k('s_add_u32 s4, s4, s5')
    k(f's_and_b32 s5, s{S_LT}, 1'); k('s_lshl_b32 s5, s5, 7'); k('s_add_u32 s4, s4, s5')
    k(f's_lshl_b32 s5, s{S_WAVE}, 5'); k('s_add_u32 s4, s4, s5')
    k(f's_lshl_b32 s5, s{S_WAVE}, 11'); k(f's_add_u32 s5, s5, {rs_l}')
    def resdma(q):
        k(f's_add_u32 m0, s5, {q*1024}')
        k(f's_add_u32 s27, s4, {q*32*256}')
        vm.issue(f'buffer_load_dwordx4 v{vr}, {sr4(SRD_HB)}, s27 offen sc1 lds','res')
    for s in range(16):
        p=s&1
        k('s_waitcnt lgkmcnt(0)')
        ST(f'c_s{s}')
        side=[]
        nxt=[]
        if s<15:
            if (s+1)%2==0:
                c1=(s+1)//2
                vm.wait(f'h{c1}')
                k('s_barrier')
                if c1+2<=7: side=[(lambda q=q,c=c1+2: dma1(c,q)) for q in range(4)]
                elif c1==6: side=[(lambda q=q: resdma(q)) for q in range(2)]
            nxt=readsH(s+1)+readsW(s+1)
        if not side:
            side=[w2load]*min(3,56-nw2[0])
        slots={2:0,6:1,10:2,14:3} if len(side)==4 else {2:0,8:1,14:2}
        mf=[]
        for c in range(2):
            if nostats and s>0: break
            mf.append(f'v_mfma_f32_16x16x32_bf16 {V(ssum[c],4)}, {V(ones,4)}, {V(fH[p][c],4)}, {V(ssum[c],4)}')
            mf.append(f'v_mfma_f32_16x16x32_bf16 {V(ssq[c],4)}, {V(fH[p][c],4)}, {V(fH[p][c],4)}, {V(ssq[c],4)}')
        for j in range(7):
            for c in range(2):
                mf.append(f'v_mfma_f32_16x16x32_bf16 {V(acc[j][c],4)}, {V(fW[p][j],4)}, {V(fH[p][c],4)}, {V(acc[j][c],4)}')
        if len(mf)<18: slots={a*13//17:b for a,b in slots.items()}
        n=0
        for mi,m in enumerate(mf):
            k(m)
            if mi in slots and slots[mi]<len(side): side[slots[mi]]()
            elif n<len(nxt): k(nxt[n]); n+=1
    while nw2[0]<56: w2load()
    ST('c_main')
    sel=k.v.alloc(); bp=k.v.alloc()
    rstd=[k.v.alloc(2,2) for _ in range(2)]; nmr=[k.v.alloc(2,2) for _ in range(2)]
    k(f'v_and_b32 v{t0}, 15, v{lane}')
    k(f'v_lshrrev_b32 v{t1}, 2, v{t0}')
    k(f'v_lshl_add_u32 v{bp}, v{t1}, 4, v{t0}')
    k(f'v_lshlrev_b32 v{bp}, 2, v{bp}')
    k(f'v_and_b32 v{sel}, 3, v{t0}')
    k('s_mov_b32 s24, 0xffff0000')
    k(f's_mov_b32 s25, {f32hex(1.0/512)}')
    k(f's_mov_b32 s26, {f32hex(1e-5)}')
    for c in range(2):
        q=ssq[c]
        k(f'v_cmp_eq_u32 vcc, 1, v{sel}')
        k(f'v_cndmask_b32 v{q}, v{q}, v{q+1}, vcc')
        k(f'v_cmp_eq_u32 vcc, 2, v{sel}')
        k(f'v_cndmask_b32 v{q}, v{q}, v{q+2}, vcc')
        k(f'v_cmp_eq_u32 vcc, 3, v{sel}')
        k(f'v_cndmask_b32 v{q}, v{q}, v{q+3}, vcc')
        k(f'ds_bpermute_b32 v{q+1}, v{bp}, v{q}')
    k('s_waitcnt lgkmcnt(0)')
    def rb(dst,src):
        k(f'v_cvt_pk_bf16_f32 v{dst}, v{src}, v{src}')
        k(f'v_and_b32 v{dst}, s24, v{dst}')
    for c in range(2):
        m=ssum[c]; q=ssq[c]+1
        k(f'v_mul_f32 v{m}, s25, v{m}')
        k(f'v_mul_f32 v{q}, s25, v{q}')
        k(f'v_fma_f32 v{q}, -v{m}, v{m}, v{q}')
        k(f'v_max_f32 v{q}, 0, v{q}')
        rb(q,q)
        k(f'v_add_f32 v{q}, s26, v{q}')
        rb(q,q)
        k(f'v_sqrt_f32 v{q}, v{q}')
        rb(q,q)
        k(f'v_rcp_f32 v{rstd[c]}, v{q}')
        rb(m,m)
        k(f'v_mul_f32 v{nmr[c]}, v{m}, v{rstd[c]}')
        k(f'v_sub_f32 v{nmr[c]}, 0, v{nmr[c]}')
    ST('c_stats')
    c0=math.sqrt(2/math.pi)
    k1c=-2*c0*LOG2E; k3c=k1c*0.044715
    kc1=ones; one=ones+2
    k(f's_mov_b32 s28, {f32hex(k3c)}'); k(f's_mov_b32 s29, {f32hex(k3c)}')
    k(f'v_mov_b32 v{kc1}, {f32hex(k1c)}'); k(f'v_mov_b32 v{kc1+1}, {f32hex(k1c)}')
    k(f'v_mov_b32 v{one}, 1.0'); k(f'v_mov_b32 v{one+1}, 1.0')
    k(f's_lshr_b32 s27, s{S_WAVE}, 1'); k(f's_lshl_b32 s30, s{S_MT}, 1'); k('s_add_u32 s30, s30, s27')
    k(f's_mul_i32 s30, s30, {56*4096}')
    k(f's_and_b32 s27, s{S_WAVE}, 1'); k('s_lshl_b32 s27, s27, 11'); k('s_add_u32 s30, s30, s27')
    k(f's_mul_i32 s31, s{S_NT}, 7')
    k(f's_add_u32 s4, s31, s{S_PAR}'); k('s_lshr_b32 s4, s4, 1'); k('s_lshl_b32 s4, s4, 12'); k('s_add_u32 s4, s4, s30')
    k(f's_mul_i32 s5, s{S_PAR}, 7'); k('s_sub_u32 s5, 6, s5'); k('s_add_u32 s5, s5, s31'); k('s_lshr_b32 s5, s5, 1')
    k('s_lshl_b32 s5, s5, 12'); k('s_add_u32 s5, s5, s30'); k(f's_lshl_b32 s27, s{S_PAR}, 9'); k('s_add_u32 s5, s5, s27')
    vl8=sel
    k(f'v_lshlrev_b32 v{bp}, 3, v{lane}')
    pool=[fW[0][j] for j in range(7)]+[fW[1][j] for j in range(7)]
    outp=[fH[0][0],fH[0][1],fH[1][0],fH[1][1]]
    def gelu_tile(a,csr,b1r,c,tmp,dst):
        X=tmp[0]; E=tmp[1]
        P=lambda r,h: V(r+2*h,2)
        st=[[] for _ in range(9)]
        for h in range(2):
            st[0].append(f'v_pk_fma_f32 {P(X,h)}, {P(csr,h)}, {V(nmr[c],2)}, {P(b1r,h)} op_sel_hi:[1,0,1]')
            st[1].append(f'v_pk_fma_f32 {P(X,h)}, {P(a,h)}, {V(rstd[c],2)}, {P(X,h)} op_sel_hi:[1,0,1]')
            st[2].append(f'v_pk_mul_f32 {P(E,h)}, {P(X,h)}, {P(X,h)}')
            st[3].append(f'v_pk_fma_f32 {P(E,h)}, {P(E,h)}, s[28:29], {V(kc1,2)}')
            st[4].append(f'v_pk_mul_f32 {P(E,h)}, {P(E,h)}, {P(X,h)}')
            st[5]+= [f'v_exp_f32 v{E+2*h}, v{E+2*h}', f'v_exp_f32 v{E+2*h+1}, v{E+2*h+1}']
            st[6].append(f'v_pk_add_f32 {P(E,h)}, {P(E,h)}, {V(one,2)}')
            st[7]+= [f'v_rcp_f32 v{E+2*h}, v{E+2*h}', f'v_rcp_f32 v{E+2*h+1}, v{E+2*h+1}']
            st[8].append(f'v_pk_mul_f32 {P(X,h)}, {P(X,h)}, {P(E,h)}')
        fin=[f'v_cvt_pk_bf16_f32 v{dst+h}, v{X+2*h}, v{X+2*h+1}' for h in range(2)]
        return st,fin
    oi=0
    for c in range(2):
        for q in range(3):
            o=outp[oi%4]; oi+=1
            sa,fa=gelu_tile(acc[2*q][c],cs[2*q],b1[2*q],c,(pool[0],pool[1]),o)
            sb,fb=gelu_tile(acc[2*q+1][c],cs[2*q+1],b1[2*q+1],c,(pool[2],pool[3]),o+2)
            for x,y in zip(sa,sb):
                for l in x+y: k(l)
            for l in fa+fb: k(l)
            k(f's_add_u32 s27, s4, {q*4096+c*1024}')
            k(f'buffer_store_dwordx4 {V(o,4)}, v{vl}, {sr4(SRD_H1)}, s27 offen sc1')
    o=outp[oi%4]
    sa,fa=gelu_tile(acc[6][0],cs[6],b1[6],0,(pool[0],pool[1]),o)
    sb,fb=gelu_tile(acc[6][1],cs[6],b1[6],1,(pool[2],pool[3]),o+2)
    for x,y in zip(sa,sb):
        for l in x+y: k(l)
    for l in fa+fb: k(l)
    k(f'buffer_store_dwordx2 {V(o,2)}, v{bp}, {sr4(SRD_H1)}, s5 offen sc1')
    k(f'buffer_store_dwordx2 {V(o+2,2)}, v{bp}, {sr4(SRD_H1)}, s5 offen offset:1024 sc1')
    ST('c_gelu')
    k.v.release(base_mark)
    t0=k.v.alloc(); t1=k.v.alloc(); t2=k.v.alloc(); t3=k.v.alloc(); sv=k.v.alloc(); vb=k.v.alloc()
    k(f's_lshl_b32 s26, s{S_MT}, 7'); k(f's_add_u32 s26, s26, {16*128}')
    k(f'v_mov_b32 v{sv}, s26')
    k(f'v_lshrrev_b32 v{t0}, 4, v{lane}')
    k(f'v_lshlrev_b32 v{vb}, 3, v{t0}')
    k('s_waitcnt vmcnt(0)')
    ST('c_ack')
    k('s_barrier')
    lw=k.lab('na2')
    k(f's_cmp_eq_u32 s{S_WAVE}, 0'); k(f's_cbranch_scc0 {lw}')
    arrive(k,sv,lane,t0)
    k.label(lw)
    ST('c_arrive')
    vm=VM(k)
    b2=[k.v.alloc(4,4) for _ in range(4)]
    k(f's_lshl_b32 s24, s{S_DT}, 7')
    for j in range(4):
        vm.issue(f'buffer_load_dwordx2 {V(b2[j]+2,2)}, v{vb}, {sr4(SRD_B2)}, s24 offen offset:{32*j}','b2')
    NR=PD+1
    fHd=[[k.v.alloc(4,4) for _ in range(4)] for _ in range(NR)]
    acc=[[k.v.alloc(4,4) for _ in range(4)] for _ in range(4)]
    for a in sum(acc,[]):
        for r in range(4): k(f'v_mov_b32 v{a+r}, 0')
    k(f's_mul_i32 s25, s{S_LT}, {56*4096}'); k(f's_mul_i32 s26, s{S_WAVE}, {14*4096}'); k('s_add_u32 s25, s25, s26')
    vli=[k.v.alloc() for _ in range(4)]; vli8=[k.v.alloc() for _ in range(4)]
    wi=[k.v.alloc() for _ in range(3)]; rdv=k.v.alloc(); rr_=k.v.alloc(); so=k.v.alloc()
    k(f'v_lshlrev_b32 v{t1}, 3, v{lane}')
    for i in range(4):
        k(f's_add_u32 s26, s{S_WAVE}, {i}'); k('s_and_b32 s26, s26, 3')
        k(f's_lshl_b32 s27, s26, 10')
        k(f'v_add_u32 v{vli[i]}, s27, v{vl}')
        k(f'v_add_u32 v{vli8[i]}, s27, v{t1}')
        if i>0:
            k(f's_mul_i32 s27, s26, 12288'); k(f's_add_u32 s27, s27, {(i-1)*4096}')
            k(f'v_add_u32 v{wi[i-1]}, s27, v{vl}')
    k(f's_mul_i32 s27, s{S_WAVE}, 12288')
    k(f'v_add_u32 v{rdv}, s27, v{vl}')
    k(f's_lshl_b32 s29, s{S_WAVE}, 11'); k(f's_add_u32 s29, s29, {rs_l}')
    k(f'v_add_u32 v{rr_}, s29, v{t1}')
    k(f'v_and_b32 v{t0}, 15, v{lane}')
    k(f'v_lshlrev_b32 v{so}, 10, v{t0}')
    k(f'v_add_u32 v{so}, v{so}, v{vb}')
    k(f's_lshl_b32 s4, s{S_LT}, 16'); k(f's_lshl_b32 s28, s{S_WAVE}, 14'); k('s_add_u32 s4, s4, s28'); k('s_add_u32 s4, s4, s24')
    res=[k.v.alloc(2,2) for _ in range(4)]
    for j in range(4):
        k(f'ds_read_b64_tr_b16 {V(res[j],2)}, v{rr_} offset:{j*512}')
    vm.wait('b2')
    for j in range(4):
        k(f'v_lshlrev_b32 v{b2[j]}, 16, v{b2[j]+2}')
        k(f'v_and_b32 v{b2[j]+1}, 0xffff0000, v{b2[j]+2}')
        k(f'v_lshlrev_b32 v{b2[j]+2}, 16, v{b2[j]+3}')
        k(f'v_and_b32 v{b2[j]+3}, 0xffff0000, v{b2[j]+3}')
    resf=[k.v.alloc(4,4) for _ in range(4)]
    k('s_waitcnt lgkmcnt(0)')
    for j in range(4):
        k(f'v_lshlrev_b32 v{resf[j]}, 16, v{res[j]}')
        k(f'v_and_b32 v{resf[j]+1}, 0xffff0000, v{res[j]}')
        k(f'v_lshlrev_b32 v{resf[j]+2}, 16, v{res[j]+1}')
        k(f'v_and_b32 v{resf[j]+3}, 0xffff0000, v{res[j]+1}')
    lw=k.lab('np2')
    k(f's_cmp_eq_u32 s{S_WAVE}, 0'); k(f's_cbranch_scc0 {lw}')
    poll(k,sv,1,16,lane,t0)
    k.label(lw)
    k('s_waitcnt vmcnt(0)')
    k('s_barrier')
    ST('d_bar')
    vm=VM(k)
    def issue_list(s):
        out=[]
        for i in range(4):
            first=(i==0)
            if s in (3,10):
                def f(i=i,first=first):
                    if first: k(f's_add_u32 s26, s25, {s*4096}')
                    vm.issue(f'buffer_load_dwordx2 {V(fHd[s%NR][i],2)}, v{vli8[i]}, {sr4(SRD_H1)}, s26 offen {gsc}',f'g{s}')
                    vm.issue(f'buffer_load_dwordx2 {V(fHd[s%NR][i]+2,2)}, v{vli8[i]}, {sr4(SRD_H1)}, s26 offen offset:512 {gsc}',f'g{s}')
            else:
                def f(i=i,first=first):
                    if first: k(f's_add_u32 s26, s25, {s*4096}')
                    vm.issue(f'buffer_load_dwordx4 {V(fHd[s%NR][i],4)}, v{vli[i]}, {sr4(SRD_H1)}, s26 offen {gsc}',f'g{s}')
            out.append(f)
        return out
    for s in range(PD):
        for f in issue_list(s): f()
    for s in range(14):
        vm.wait(f'g{s}')
        ST(f'd_s{s}')
        side=issue_list(s+PD) if s+PD<=13 else []
        n=0
        for j in range(4):
            for i in range(4):
                k(f'v_mfma_f32_16x16x32_bf16 {V(acc[j][i],4)}, {Ac(16*s+4*j,4)}, {V(fHd[s%NR][i],4)}, {V(acc[j][i],4)}')
                if (4*j+i)%4==1 and n<len(side): side[n](); n+=1
    ST('d_main')
    for i in range(1,4):
        for j in range(4):
            k(f'ds_write_b128 v{wi[i-1]}, {V(acc[j][i],4)} offset:{j*1024}')
    k('s_waitcnt lgkmcnt(0)')
    k('s_barrier')
    ST('d_red')
    tmp=[[fHd[i][j] for j in range(4)] for i in range(3)]
    for j in range(4):
        for i in range(3):
            k(f'ds_read_b128 {V(tmp[i][j],4)}, v{rdv} offset:{i*4096+j*1024}')
    T=[fHd[4][0]+i for i in range(4)]; O=[fHd[4][1],fHd[4][1]+2,fHd[4][2],fHd[4][2]+2]
    k('s_mov_b32 s28, 0xffff0000')
    for j in range(4):
        a=acc[j][0]
        k(f's_waitcnt lgkmcnt({3*(3-j)})')
        for i in range(3):
            for h in range(2): k(f'v_pk_add_f32 {V(a+2*h,2)}, {V(a+2*h,2)}, {V(tmp[i][j]+2*h,2)}')
        for h in range(2):
            y0=a+2*h; y1=y0+1
            if mimic_out:
                k(f'v_cvt_pk_bf16_f32 v{T[h]}, v{y0}, v{y1}')
                k(f'v_lshlrev_b32 v{y0}, 16, v{T[h]}')
                k(f'v_and_b32 v{y1}, s28, v{T[h]}')
        for h in range(2):
            k(f'v_pk_add_f32 {V(a+2*h,2)}, {V(a+2*h,2)}, {V(b2[j]+2*h,2)}')
        for h in range(2):
            y0=a+2*h; y1=y0+1
            if mimic_out:
                k(f'v_cvt_pk_bf16_f32 v{T[h]}, v{y0}, v{y1}')
                k(f'v_lshlrev_b32 v{y0}, 16, v{T[h]}')
                k(f'v_and_b32 v{y1}, s28, v{T[h]}')
        for h in range(2):
            k(f'v_pk_add_f32 {V(a+2*h,2)}, {V(a+2*h,2)}, {V(resf[j]+2*h,2)}')
        if perturb and j==0:
            lpz=k.lab('ptb')
            k(f's_or_b32 s26, s2, s{S_WAVE}'); k('s_cmp_eq_u32 s26, 0'); k(f's_cbranch_scc0 {lpz}')
            k(f'v_mov_b32 v{T[0]}, {f32hex(perturb)}')
            k(f'v_cmp_eq_u32 vcc, 0, v{lane}')
            k(f'v_cndmask_b32 v{T[0]}, 0, v{T[0]}, vcc')
            k(f'v_add_f32 v{a}, v{a}, v{T[0]}')
            k.label(lpz)
        for h in range(2):
            k(f'v_cvt_pk_bf16_f32 v{O[j]+h}, v{a+2*h}, v{a+2*h+1}')
        k(f'buffer_store_dwordx2 {V(O[j],2)}, v{so}, {sr4(SRD_OUT)}, s4 offen offset:{32*j}')
    ST('d_epi')
    k.end(1)
    k.label(lx); k('s_endpgm')
    k.label(f'{name}_codeend')
    return k, dict(name=name,grid=256,block=256,lds=LDS_TOTAL,vgpr=256,sgpr=74,agpr=224)
```

```python
import sys
from kb import *
import kb, build, k0
import kp2 as kp
def make(stamp=False, **kw):
    kb.STAMP_ON[0]=stamp
    P=kp.build_kp(**kw)
    ninst=sum(1 for l in P[0].finish() if l.startswith('    ') and not l.strip().startswith(';'))
    cb=min(ninst*8,32*1024)
    Z=k0.build_k0(code_label='kp_main_kernel',code_bytes=cb)
    print(Z[1],P[1],'kp instrs',ninst, 'max vgpr used',P[0].v.maxused)
    return build.build([Z,P])
if __name__=='__main__':
    stamp=len(sys.argv)>2 and sys.argv[2]=='stamp'
    kw={}
    for a in sys.argv[3:]:
        n,v=a.split('=')
        kw[n]=v.split(',') if n=='stamps' else eval(v)
    s=make(stamp,**kw)
    path=sys.argv[1]; open(path,'w').write(s); print('wrote',path,len(s))
```

```python
from kb import *
import struct, math
WS_XG=0
WS_LG=2<<20
WS_KR=4<<20
KLD=4160
WS_HB=8<<20
WS_H1=10<<20
WS_CS=18<<20
WS_W2F=6<<20
WS_W1F=(4<<20)+(64<<10)
WS_SYNC=4<<20
WS_XL=0
L=2048; D=512; F=1792; N=128
LOG2E=1.4426950408889634
def f32hex(x): return '0x%08x'%struct.unpack('<I',struct.pack('<f',x))[0]
def f32split(x):
    hi=struct.unpack('<f',struct.pack('<f',x))[0]
    return hi,x-hi
def srd(k,sreg,base_s,off,size):
    if off:
        k(f's_add_u32 s{sreg}, s{base_s}, {hex(off)}')
        k(f's_addc_u32 s{sreg+1}, s{base_s+1}, 0')
    else:
        k(f's_mov_b32 s{sreg}, s{base_s}')
        k(f's_mov_b32 s{sreg+1}, s{base_s+1}')
    k(f's_mov_b32 s{sreg+2}, {hex(size)}')
    k(f's_mov_b32 s{sreg+3}, 0x00020000')
def reduce64_pair(k, a, b, sa, sb):
    for r in (8,4,2,1):
        k(f'v_add_f32_dpp v{a}, v{a}, v{a} row_ror:{r} row_mask:0xf bank_mask:0xf')
        k(f'v_add_f32_dpp v{b}, v{b}, v{b} row_ror:{r} row_mask:0xf bank_mask:0xf')
    k(f'v_add_f32_dpp v{a}, v{a}, v{a} row_bcast:15 row_mask:0xa bank_mask:0xf')
    k(f'v_add_f32_dpp v{b}, v{b}, v{b} row_bcast:15 row_mask:0xa bank_mask:0xf')
    k(f'v_add_f32_dpp v{a}, v{a}, v{a} row_bcast:31 row_mask:0xc bank_mask:0xf')
    k(f'v_add_f32_dpp v{b}, v{b}, v{b} row_bcast:31 row_mask:0xc bank_mask:0xf')
    k(f'v_readlane_b32 s{sa}, v{a}, 63')
    k(f'v_readlane_b32 s{sb}, v{b}, 63')
def rne_bf16_int(j):
    u=struct.unpack('<I',struct.pack('<f',float(j)))[0]
    u=(u+0x7FFF+((u>>16)&1))&0xFFFF0000
    return int(struct.unpack('<f',struct.pack('<I',u))[0])
def gather_table():
    t=[]
    for x in range(2048):
        p=rne_bf16_int(2047-x)
        t.append((p&~1)+2112*(p&1))
    return t
class VM:
    def __init__(s,k): s.k=k; s.ops=[]
    def issue(s,text,tag=None):
        s.k(text); s.ops.append(tag)
    def wait(s,tag,extra=''):
        idx=max(i for i,t in enumerate(s.ops) if t==tag)
        n=len(s.ops)-1-idx
        assert n<=63,(tag,n)
        s.k(f's_waitcnt vmcnt({n}){" "+extra if extra else ""}')
    def wait_all(s,extra=''):
        s.k(f's_waitcnt vmcnt(0){" "+extra if extra else ""}')
```

```python
import sys
sys.path.insert(0,'lib')
import hazard
class Regs:
    def __init__(s, kind, lo, hi):
        s.kind=kind; s.lo=lo; s.hi=hi; s.used=[False]*hi; s.maxused=lo-1; s.stack=[]
    def alloc(s, n=1, align=1, name=None):
        a=(s.lo+align-1)//align*align
        while a+n<=s.hi:
            if not any(s.used[a:a+n]):
                for i in range(a,a+n): s.used[i]=True
                s.stack.append((a,n)); s.maxused=max(s.maxused,a+n-1)
                return a
            a+=align
        raise RuntimeError(f'out of {s.kind} regs (want {n}, {s.used.count(False)-s.lo} free)')
    def free(s,*regs):
        for r in regs:
            if isinstance(r,(list,tuple)): s.free(*r); continue
            for e in s.stack:
                if e[0]==r:
                    for i in range(e[0],e[0]+e[1]): s.used[i]=False
                    s.stack.remove(e); break
            else: raise RuntimeError(f'free of unknown reg {r}')
    def mark(s): return list(s.stack)
    def release(s,m):
        keep=set(m)
        for e in list(s.stack):
            if e not in keep:
                for i in range(e[0],e[0]+e[1]): s.used[i]=False
                s.stack.remove(e)
    def nfree(s): return s.used[s.lo:].count(False)
STAMP_ON=[False]
class KB:
    def __init__(s,name,vlo=1,slo=3):
        s.name=name; s.lines=[]; s.v=Regs('v',vlo,256); s.s=Regs('s',slo,100); s.a=Regs('a',0,256); s._l=0
    def __call__(s,t=''):
        for l in str(t).split('\n'):
            l=l.rstrip()
            if l.strip()=='' : continue
            st=l.strip()
            if st.endswith(':') or st.startswith('.'): s.lines.append(st)
            else: s.lines.append('    '+st)
    def c(s,t): s.lines.append('    ; '+t)
    def lab(s,b):
        s._l+=1; return f'{s.name}_{b}{s._l}'
    def label(s,l): s.lines.append(l+':')
    NST=11
    def start_stamp(s):
        if STAMP_ON[0]:
            s('s_mov_b32 s73, s2')
            s('s_memrealtime s[74:75]')
            s('s_memtime s[76:77]')
            for i in range(s.NST): s(f's_mov_b64 s[{78+2*i}:{79+2*i}], 0')
    def stamp(s,i):
        if STAMP_ON[0]:
            assert i<=s.NST
            s(f's_memtime s[{76+2*i}:{77+2*i}]')
    def end(s, idx=None):
        if STAMP_ON[0] and idx is not None:
            s('s_mov_b64 exec, -1')
            s('s_waitcnt vmcnt(0) lgkmcnt(0)')
            s('s_memrealtime s[100:101]')
            s('s_memtime s[6:7]')
            s('s_load_dwordx2 s[4:5], s[0:1], 112')
            s('s_waitcnt lgkmcnt(0)')
            s('s_sub_u32 s6, s6, s76')
            s(f's_add_u32 s4, s4, {hex((24<<20)+idx*(1<<20))}')
            s('s_addc_u32 s5, s5, 0')
            s('v_lshrrev_b32 v1, 6, v0')
            s('v_and_b32 v2, 63, v0')
            s('v_lshlrev_b32 v1, 7, v1')
            s('s_lshl_b32 s7, s73, 10')
            s('v_add_u32 v1, s7, v1')
            for i in range(s.NST): s(f's_sub_u32 s{78+2*i}, s{78+2*i}, s76')
            vals=['s74','s75','s100','s101']+[f's{78+2*i}' for i in range(s.NST)]+['0']*(20-s.NST)+['s6']
            s('v_cmp_eq_u32 vcc, 0, v2')
            s('s_and_saveexec_b64 s[76:77], vcc')
            for n in range(0,len(vals),4):
                grp=vals[n:n+4]
                for q,x in enumerate(grp): s(f'v_mov_b32 v{4+q}, {x}')
                s(f'global_store_dwordx4 v1, v[4:7], s[4:5] offset:{4*n}')
        s('s_endpgm')
    def finish(s,verbose=False):
        return hazard.fix(s.lines,verbose)
def V(a,n=1): return f'v{a}' if n==1 else f'v[{a}:{a+n-1}]'
def S(a,n=1): return f's{a}' if n==1 else f's[{a}:{a+n-1}]'
def Ac(a,n=1): return f'a{a}' if n==1 else f'a[{a}:{a+n-1}]'
def desc(name,vgpr,sgpr,agpr=0):
    if STAMP_ON[0]: sgpr=102; vgpr=max(vgpr,16)
    acc=(vgpr+3)//4*4
    if acc<4: acc=4
    nfv=acc+agpr if agpr else vgpr
    return f'''.p2align 6
.amdhsa_kernel {name}
  .amdhsa_next_free_vgpr {nfv}
  .amdhsa_next_free_sgpr {sgpr}
  .amdhsa_accum_offset {acc}
  .amdhsa_group_segment_fixed_size 0
  .amdhsa_kernarg_size 120
  .amdhsa_user_sgpr_count 2
  .amdhsa_user_sgpr_kernarg_segment_ptr 1
  .amdhsa_system_sgpr_workgroup_id_x 1
  .amdhsa_float_denorm_mode_32 3
  .amdhsa_float_denorm_mode_16_64 3
  .amdhsa_ieee_mode 0
  .amdhsa_dx10_clamp 0
.end_amdhsa_kernel
'''
```

```python
from common import *
CHB=17088; LP=0; LO=512; XO=4608; EO=8704; OO=12864
RB=114688
LDS_TOTAL=163840
POLL_LIMIT=40000
KCH=40960; KPL=20480; KRS=160
LNS=0
W2S=2*KCH
W1S=W2S+32*288
WS_ST=WS_LG
WSZ=32<<20
C0=0; CW=4096; C1=8192; C2=12288
S_WAVE=20; S_PI=21; S_C=22; S_HD=23
P_U=36; P_LOGA=38; P_AIM=40; P_CRE=42; P_CIM=44; P_LDT=46; P_DSK=48; P_W1=52; P_B1=54; P_W2=56; P_B2=58; P_OUT=60; P_DBG=62; P_WS=64
S_MT=66; S_NT=67; S_PAR=68; S_LT=69; S_DT=70; S_D0=71
WS=8; T0=12; T1=16; T2=32
def sr4(a): return f's[{a}:{a+3}]'

def build_km(name='km_kernel', mimic=False, mimic_out=False, W2_EARLY=0, W1_EVERY=7, PD=4, stamps=None, single=False, outsc='', w2sc='sc1', codepf=True, nowst=False, atomsc='', ARRW=1, nocw=False, warmctr=False):
    k=KB(name)
    stamps=stamps or []
    def ST(n):
        if n in stamps: k.stamp(stamps.index(n)+1)
    def poll(voff, nlanes, target, lane, tmp, srdreg=WS, soff='0'):
        lp=k.lab('poll'); ld=k.lab('polld')
        k(f'v_cmp_gt_u32 vcc, {nlanes}, v{lane}')
        k('s_and_saveexec_b64 s[6:7], vcc')
        k('s_mov_b32 s72, 0')
        k.label(lp)
        k(f'buffer_load_dword v{tmp}, v{voff}, {sr4(srdreg)}, {soff} offen sc1')
        k('s_waitcnt vmcnt(0)')
        k(f'v_cmp_gt_u32 vcc, {target}, v{tmp}')
        k(f's_cbranch_vccz {ld}')
        k('s_add_u32 s72, s72, 1')
        k(f's_cmp_lt_u32 s72, {POLL_LIMIT}')
        k(f's_cbranch_scc1 {lp}')
        k.label(ld)
        k('s_mov_b64 exec, s[6:7]')
    def arrive(voff_reg, lane, tmp):
        k(f'v_mov_b32 v{tmp}, 1')
        k(f'v_cmp_eq_u32 vcc, 0, v{lane}')
        k('s_and_saveexec_b64 s[6:7], vcc')
        k(f'buffer_atomic_add v{tmp}, v{voff_reg}, {sr4(WS)}, 0 offen {atomsc}')
        k('s_mov_b64 exec, s[6:7]')
    def waven(n,fn):
        l=k.lab('nw'); k(f's_cmp_eq_u32 s{S_WAVE}, {n}'); k(f's_cbranch_scc0 {l}'); fn(); k.label(l)
    def wave0(fn): waven(0,fn)
    def waveA(fn): waven(ARRW,fn)
    k('.text'); k(f'.globl {name}'); k('.p2align 8'); k(f'.type {name},@function'); k.label(name)
    lx=k.lab('exit'); tabl=f'{name}_gtab'
    k.start_stamp()
    k('s_cmp_ge_u32 s2, 256'); k(f's_cbranch_scc1 {lx}')
    k('s_load_dwordx16 s[36:51], s[0:1], 0')
    k('s_load_dwordx8 s[52:59], s[0:1], 64')
    k('s_load_dwordx4 s[60:63], s[0:1], 96')
    k('s_load_dwordx2 s[64:65], s[0:1], 112')
    lane=k.v.alloc(); vl=k.v.alloc(); vsh=k.v.alloc(); vpl=k.v.alloc()
    base_mark=k.v.mark()
    wv=k.v.alloc(); t0=k.v.alloc(); t1=k.v.alloc(); t2=k.v.alloc(); t3=k.v.alloc()
    k(f'v_and_b32 v{lane}, 63, v0')
    k(f'v_lshrrev_b32 v{wv}, 6, v0')
    k(f'v_lshlrev_b32 v{vl}, 4, v{lane}')
    k('s_getpc_b64 s[28:29]')
    lp0=k.lab('pc'); k.label(lp0)
    k(f's_add_u32 s28, s28, {tabl}-{lp0}')
    k('s_addc_u32 s29, s29, 0')
    k(f'v_readfirstlane_b32 s{S_WAVE}, v{wv}')
    vm=VM(k)
    vt16=k.v.alloc()
    k(f'v_lshlrev_b32 v{vt16}, 4, v0')
    k('s_and_b32 s26, s2, 7'); k('s_lshr_b32 s27, s2, 3')
    k(f's_lshl_b32 s{S_PI}, s26, 5'); k(f's_add_u32 s{S_PI}, s{S_PI}, s27')
    k(f's_lshr_b32 s{S_MT}, s27, 4'); k('s_lshl_b32 s72, s26, 1'); k(f's_add_u32 s{S_MT}, s{S_MT}, s72')
    k(f's_and_b32 s{S_NT}, s27, 15'); k(f's_and_b32 s{S_PAR}, s27, 1')
    k(f's_lshr_b32 s{S_LT}, s27, 3'); k('s_lshl_b32 s72, s26, 2'); k(f's_add_u32 s{S_LT}, s{S_LT}, s72')
    k(f's_and_b32 s{S_DT}, s27, 7')
    k(f's_lshl_b32 s{S_D0}, s{S_PI}, 1')
    k(f's_lshr_b32 s{S_C}, s{S_WAVE}, 1')
    k(f's_and_b32 s{S_HD}, s{S_WAVE}, 1')
    k('s_and_b32 s27, s27, 15'); k('s_lshl_b32 s27, s27, 8'); k(f's_add_u32 s27, s27, {WS_SYNC}')
    k(f'v_mov_b32 v{vsh}, s27')
    k(f'v_lshlrev_b32 v{vpl}, 8, v{lane}')
    k(f'v_add_u32 v{vpl}, {WS_SYNC}, v{vpl}')
    k('s_lshl_b32 s24, s2, 13')
    k(f's_lshl_b32 s25, s{S_WAVE}, 11')
    k('s_add_u32 s25, s25, s24')
    k(f's_add_u32 s26, s{S_D0}, s{S_C}')
    k('s_lshl_b32 s27, s26, 8'); k(f's_lshl_b32 s30, s{S_HD}, 7'); k('s_add_u32 s27, s27, s30')
    voff2=k.v.alloc(); vdt=k.v.alloc()
    k(f'v_lshlrev_b32 v{voff2}, 1, v{lane}')
    k('s_lshl_b32 s26, s26, 1')
    k(f'v_mov_b32 v{vdt}, s26')
    k('s_sub_u32 s30, s2, 32'); k('s_cmp_lt_u32 s2, 224'); k('s_cselect_b32 s30, s2, s30')
    k('s_lshr_b32 s4, s30, 2'); k('s_and_b32 s5, s30, 3')
    vw2=k.v.alloc()
    k(f'v_lshrrev_b32 v{t0}, 4, v0')
    k(f'v_and_b32 v{t1}, 15, v0')
    k(f'v_lshlrev_b32 v{vw2}, 10, v{t0}')
    k(f'v_lshl_add_u32 v{vw2}, v{t1}, 4, v{vw2}')
    k('s_lshl_b32 s30, s4, 15'); k('s_lshl_b32 s31, s5, 8'); k('s_add_u32 s30, s30, s31')
    vw1=[k.v.alloc(),k.v.alloc()]; ve2=k.v.alloc()
    k('s_mov_b32 s31, 4682')
    k(f'v_add_u32 v{ve2}, 256, v0'); k(f'v_min_u32 v{ve2}, 447, v{ve2}')
    for r_,src in ((vw1[0],0),(vw1[1],ve2)):
        k(f'v_mul_u32_u24 v{t0}, s31, v{src}')
        k(f'v_lshrrev_b32 v{t0}, 16, v{t0}')
        k(f'v_mul_u32_u24 v{t1}, 14, v{t0}')
        k(f'v_sub_u32 v{t1}, v{src}, v{t1}')
        k(f'v_mul_u32_u24 v{t0}, {F*2}, v{t0}')
        k(f'v_lshl_add_u32 v{r_}, v{t1}, 4, v{t0}')
    k('s_lshr_b32 s31, s2, 4'); k(f's_mul_i32 s31, s31, {32*F*2}'); k('s_and_b32 s7, s2, 15'); k('s_mul_i32 s7, s7, 224'); k('s_add_u32 s7, s7, s31')
    ST('a_pre')
    k('s_waitcnt lgkmcnt(0)')
    ST('a_karg')
    srd(k,WS,P_WS,0,WSZ)
    lz=k.lab('zs')
    k(f's_lshl_b32 s72, s2, 2'); k(f's_add_u32 s72, s72, s{S_WAVE}'); k('s_cmp_eq_u32 s72, 3'); k(f's_cbranch_scc0 {lz}')
    k(f'v_mov_b32 v{t0}, 0')
    k(f'buffer_store_dword v{t0}, v{vpl}, {sr4(WS)}, 0 offen sc1')
    k.label(lz)
    srd(k,T0,P_U,0,L*D*2)
    x=[k.v.alloc(4,4),k.v.alloc(4,4)]
    vm.issue(f'buffer_load_dwordx4 {V(x[0],4)}, v{vl}, {sr4(T0)}, s25 offen','u')
    vm.issue(f'buffer_load_dwordx4 {V(x[1],4)}, v{vl}, {sr4(T0)}, s25 offen offset:1024','u')
    if codepf:
        lcp0=k.lab('cp0')
        cp0=k.v.alloc(4,4); cpa0=k.v.alloc()
        k(f's_cmp_eq_u32 s{S_WAVE}, 1'); k(f's_cbranch_scc0 {lcp0}')
        k('s_lshr_b32 s31, s2, 3'); k('s_lshl_b32 s31, s31, 10')
        k(f'v_add_u32 v{cpa0}, s31, v{vl}')
        k(f's_mov_b32 s31, {name}_codeend-{name}-16')
        k(f'v_min_u32 v{cpa0}, s31, v{cpa0}')
        k(f's_sub_u32 s34, s28, {tabl}-{name}'); k('s_subb_u32 s35, s29, 0')
        k(f'global_load_dwordx4 {V(cp0,4)}, v{cpa0}, s[34:35]')
        k.label(lcp0)
        k.v.free(cpa0)
    p=[k.v.alloc() for _ in range(4)]; dt=k.v.alloc()
    srd(k,T1,P_LDT,0,D*2)
    vm.issue(f'buffer_load_ushort v{dt}, v{vdt}, {sr4(T1)}, 0 offen','par')
    for i,(ptr,slot) in enumerate(((P_LOGA,T2),(P_AIM,T0),(P_CRE,T1),(P_CIM,T2))):
        srd(k,slot,ptr,0,D*N*2)
        vm.issue(f'buffer_load_ushort v{p[i]}, v{voff2}, {sr4(slot)}, s27 offen','par')
    k('s_mov_b32 s33, s30')
    k(f's_lshl_b32 s31, s{S_PI}, 2')
    k(f's_load_dword s3, s[{P_DSK}:{P_DSK+1}], s31')
    ST('a_iss')
    lz=k.lab('zf')
    k(f's_lshl_b32 s72, s2, 2'); k(f's_add_u32 s72, s72, s{S_WAVE}')
    k('s_cmp_eq_u32 s72, 3'); k(f's_cbranch_scc0 {lz}')
    k('s_waitcnt vmcnt(7)')
    if warmctr:
        k(f'v_mov_b32 v{t0}, 0')
        k(f'buffer_atomic_add v{t0}, v{vpl}, {sr4(WS)}, 0 offen')
    srd(k,T1,P_DBG,0,256)
    k(f'v_mov_b32 v{t0}, 1'); k(f'v_mov_b32 v{t1}, 0')
    k(f'buffer_store_dword v{t0}, v{t1}, {sr4(T1)}, 0 offen sc1')
    k.label(lz)
    RS=2112
    wa=k.v.alloc(); ra=k.v.alloc()
    k(f's_mul_i32 s26, s{S_WAVE}, {2*RS}'); k(f's_add_u32 s26, s26, {LNS}')
    k(f'v_lshlrev_b32 v{wa}, 5, v{lane}')
    k(f'v_add_u32 v{wa}, s26, v{wa}')
    k(f'v_bfe_u32 v{t0}, v{lane}, 2, 2')
    k(f'v_mul_u32_u24 v{ra}, {RS}, v{t0}')
    k(f'v_lshrrev_b32 v{t0}, 4, v{lane}')
    k(f'v_lshlrev_b32 v{t0}, 5, v{t0}')
    k(f'v_and_b32 v{t1}, 3, v{lane}')
    k(f'v_lshlrev_b32 v{t1}, 3, v{t1}')
    k(f'v_add3_u32 v{ra}, v{ra}, v{t0}, v{t1}')
    k(f's_lshl_b32 s26, s{S_WAVE}, 9'); k(f's_add_u32 s26, s26, {LNS}')
    k(f'v_add_u32 v{ra}, s26, v{ra}')
    z=k.v.alloc(4,4); wz=k.v.alloc()
    for r in range(4): k(f'v_mov_b32 v{z+r}, 0')
    k(f'v_bfe_u32 v{t0}, v0, 5, 1')
    k(f'v_mul_u32_u24 v{wz}, {CHB}, v{t0}')
    k(f'v_and_b32 v{t0}, 31, v0')
    k(f'v_lshl_add_u32 v{wz}, v{t0}, 4, v{wz}')
    k(f'v_add_u32 v{wz}, {RB}, v{wz}')
    k(f'v_cmp_gt_u32 vcc, 64, v0')
    k('s_and_saveexec_b64 s[34:35], vcc')
    l1=k.lab('z1'); k(f's_cbranch_execz {l1}')
    k(f'ds_write_b128 v{wz}, {V(z,4)} offset:{LP}')
    k.label(l1); k('s_mov_b64 exec, s[34:35]')
    k(f'v_bfe_u32 v{t0}, v0, 2, 1')
    k(f'v_mul_u32_u24 v{wz}, {CHB}, v{t0}')
    k(f'v_bfe_u32 v{t0}, v0, 1, 1')
    k(f'v_mul_u32_u24 v{t0}, {OO-EO}, v{t0}')
    k(f'v_and_b32 v{t1}, 1, v0')
    k(f'v_lshlrev_b32 v{t1}, 4, v{t1}')
    k(f'v_add3_u32 v{wz}, v{wz}, v{t0}, v{t1}')
    k(f'v_add_u32 v{wz}, {RB}, v{wz}')
    k(f'v_lshrrev_b32 v{t0}, 3, v0')
    k(f'v_cmp_eq_u32 vcc, 8, v{t0}')
    k('s_and_saveexec_b64 s[34:35], vcc')
    l2=k.lab('z2'); k(f's_cbranch_execz {l2}')
    k(f'ds_write_b128 v{wz}, {V(z,4)} offset:{EO+4096}')
    k.label(l2); k('s_mov_b64 exec, s[34:35]')
    f=[k.v.alloc(8,2),k.v.alloc(8,2)]
    sm=[k.v.alloc(),k.v.alloc()]
    k('s_mov_b32 s30, 0xffff0000')
    ST('a_setup')
    vm.wait('u')
    ST('a_u')
    srd(k,T0,P_W2,0,F*D*2)
    xw=[k.v.alloc(4,4),k.v.alloc(4,4)]
    vm.issue(f'buffer_load_dwordx4 {V(xw[0],4)}, v{vw2}, {sr4(T0)}, s33 offen','w')
    k('s_add_u32 s31, s33, 16384')
    vm.issue(f'buffer_load_dwordx4 {V(xw[1],4)}, v{vw2}, {sr4(T0)}, s31 offen','w')
    srd(k,T1,P_W1,0,D*F*2)
    xv=[k.v.alloc(4,4),k.v.alloc(4,4)]
    for i in range(2):
        vm.issue(f'buffer_load_dwordx4 {V(xv[i],4)}, v{vw1[i]}, {sr4(T1)}, s7 offen','w')
    for r in range(2):
        for i in range(4):
            k(f'v_lshlrev_b32 v{f[r]+2*i}, 16, v{x[r]+i}')
            k(f'v_and_b32 v{f[r]+2*i+1}, s30, v{x[r]+i}')
    q4=[k.v.alloc(4,2),k.v.alloc(4,2)]
    for r in range(2): k(f'v_readfirstlane_b32 s{24+r-0 if False else 4+r}'.replace('s4','s34').replace('s5','s35')+f', v{f[r]}')
    sh=[k.v.alloc(2,2),k.v.alloc(2,2)]
    for r in range(2): k(f'v_mov_b32 v{sh[r]}, s{34+r}')
    dv=[k.v.alloc(8,2),k.v.alloc(8,2)]
    for r in range(2):
        for i in range(4): k(f'v_pk_add_f32 {V(dv[r]+2*i,2)}, {V(f[r]+2*i,2)}, {V(sh[r],2)} op_sel_hi:[1,0] neg_lo:[0,1] neg_hi:[0,1]')
    s2=[k.v.alloc(2,2),k.v.alloc(2,2)]
    for r in range(2):
        for h in range(2): k(f'v_pk_add_f32 {V(q4[r]+2*h,2)}, {V(dv[r]+4*h,2)}, {V(dv[r]+4*h+2,2)}')
    for r in range(2): k(f'v_pk_mul_f32 {V(s2[r],2)}, {V(dv[r],2)}, {V(dv[r],2)}')
    for r in range(2): k(f'v_pk_add_f32 {V(q4[r],2)}, {V(q4[r],2)}, {V(q4[r]+2,2)}')
    for i in range(1,4):
        for r in range(2): k(f'v_pk_fma_f32 {V(s2[r],2)}, {V(dv[r]+2*i,2)}, {V(dv[r]+2*i,2)}, {V(s2[r],2)}')
    for r in range(2): k(f'v_add_f32 v{sm[r]}, v{q4[r]}, v{q4[r]+1}')
    for r in range(2): k(f'v_add_f32 v{s2[r]}, v{s2[r]}, v{s2[r]+1}')
    vals=[sm[0],s2[0],sm[1],s2[1]]
    for rr_ in (8,4,2,1):
        for v_ in vals: k(f'v_add_f32_dpp v{v_}, v{v_}, v{v_} row_ror:{rr_} row_mask:0xf bank_mask:0xf')
    for v_ in vals: k(f'v_add_f32_dpp v{v_}, v{v_}, v{v_} row_bcast:15 row_mask:0xa bank_mask:0xf')
    for v_ in vals: k(f'v_add_f32_dpp v{v_}, v{v_}, v{v_} row_bcast:31 row_mask:0xc bank_mask:0xf')
    for n_,v_ in enumerate(vals): k(f'v_readlane_b32 s{24+n_ if False else [26,27,6,7][n_]}, v{v_}, 63')
    mean=[k.v.alloc(2,2),k.v.alloc(2,2)]
    k(f's_mov_b32 s31, {f32hex(1.0/512)}')
    e1=[k.v.alloc(),k.v.alloc()]; e2=[k.v.alloc(),k.v.alloc()]
    for r in range(2):
        k(f'v_mov_b32 v{e1[r]}, s{[26,6][r]}'); k(f'v_mov_b32 v{e2[r]}, s{[27,7][r]}')
    for r in range(2):
        k(f'v_mul_f32 v{e1[r]}, s31, v{e1[r]}'); k(f'v_mul_f32 v{e2[r]}, s31, v{e2[r]}')
    for r in range(2):
        k(f'v_add_f32 v{mean[r]}, v{sh[r]}, v{e1[r]}')
        k(f'v_fma_f32 v{e2[r]}, -v{e1[r]}, v{e1[r]}, v{e2[r]}')
    for r in range(2): k(f'v_max_f32 v{e2[r]}, 0, v{e2[r]}')
    rs=[k.v.alloc(2,2),k.v.alloc(2,2)]
    def rb(dst,src,mask='s30'):
        k(f'v_cvt_pk_bf16_f32 v{dst}, v{src}, v{src}')
        k(f'v_and_b32 v{dst}, {mask}, v{dst}')
    k(f's_mov_b32 s25, {f32hex(1e-5)}')
    for r in range(2): rb(rs[r],e2[r])
    for r in range(2): k(f'v_add_f32 v{rs[r]}, s25, v{rs[r]}')
    for r in range(2): rb(rs[r],rs[r])
    for r in range(2): k(f'v_sqrt_f32 v{rs[r]}, v{rs[r]}')
    for r in range(2): rb(mean[r],mean[r])
    for r in range(2): rb(rs[r],rs[r])
    for r in range(2): k(f'v_rcp_f32 v{rs[r]}, v{rs[r]}')
    lq=[k.v.alloc(4,4),k.v.alloc(4,4)]
    for r in range(2):
        for i in range(4): k(f'v_pk_add_f32 {V(f[r]+2*i,2)}, {V(f[r]+2*i,2)}, {V(mean[r],2)} op_sel_hi:[1,0] neg_lo:[0,1] neg_hi:[0,1]')
    for r in range(2):
        for i in range(4): k(f'v_cvt_pk_bf16_f32 v{lq[r]+i}, v{f[r]+2*i}, v{f[r]+2*i+1}')
    for r in range(2):
        for i in range(4):
            k(f'v_lshlrev_b32 v{f[r]+2*i}, 16, v{lq[r]+i}')
            k(f'v_and_b32 v{f[r]+2*i+1}, s30, v{lq[r]+i}')
    for r in range(2):
        for i in range(4): k(f'v_pk_mul_f32 {V(f[r]+2*i,2)}, {V(f[r]+2*i,2)}, {V(rs[r],2)} op_sel_hi:[1,0]')
    for r in range(2):
        for i in range(4): k(f'v_cvt_pk_bf16_f32 v{lq[r]+i}, v{f[r]+2*i}, v{f[r]+2*i+1}')
    k('s_mov_b32 s26, 0x05040100'); k('s_mov_b32 s27, 0x07060302')
    il=[dv[0],dv[1]]
    ilq=[k.v.alloc(8,4),k.v.alloc(8,4)]
    for r in range(2):
        for i in range(4):
            k(f'v_perm_b32 v{ilq[r]+2*i}, v{lq[r]+i}, v{x[r]+i}, s26')
            k(f'v_perm_b32 v{ilq[r]+2*i+1}, v{lq[r]+i}, v{x[r]+i}, s27')
        k(f'ds_write_b128 v{wa}, {V(ilq[r],4)} offset:{r*RS}')
        k(f'ds_write_b128 v{wa}, {V(ilq[r]+4,4)} offset:{r*RS+16}')
    dbgv=k.v.alloc()
    def dbgload():
        srd(k,T1,P_DBG,0,256)
        k(f'v_mov_b32 v{t1}, 0')
        k(f'buffer_load_dword v{dbgv}, v{t1}, {sr4(T1)}, 0 offen sc1')
    waveA(dbgload)
    k('s_waitcnt lgkmcnt(0)')
    k('s_barrier')
    o=[k.v.alloc(4,4) for _ in range(4)]
    for cb in range(4):
        for rr in range(2):
            k(f'ds_read_b64_tr_b16 {V(o[cb]+2*rr,2)}, v{ra} offset:{cb*128+rr*4*RS}')
    k('s_lshl_b32 s26, s24, 1'); k(f's_lshl_b32 s27, s{S_WAVE}, 12'); k('s_add_u32 s26, s26, s27'); k(f's_add_u32 s26, s26, {WS_XL}')
    for cb in range(4):
        k(f's_waitcnt lgkmcnt({2*(3-cb)})')
        vm.issue(f'buffer_store_dwordx4 {V(o[cb],4)}, v{vl}, {sr4(WS)}, s26 offen offset:{cb*1024} sc1','xs')
    tb=k.v.alloc(4,4); tb9=k.v.alloc()
    vm.issue(f'global_load_dwordx4 {V(tb,4)}, v{vt16}, s[28:29]','late')
    vm.issue(f'global_load_ushort v{tb9}, v{vt16}, s[28:29] offset:16','late')
    ST('a_st')
    vm.wait('xs')
    ST('a_ack')
    k('s_barrier')
    def arr0():
        lok=k.lab('dok')
        k(f'v_readfirstlane_b32 s26, v{dbgv}')
        k('s_cmp_lg_u32 s26, 0'); k(f's_cbranch_scc1 {lok}')
        k(f'v_mov_b32 v{t1}, 0')
        poll(t1,1,1,lane,t0,srdreg=T1)
        k.label(lok)
        arrive(vsh,lane,t0)
    waveA(arr0)
    ST('a_arrive')
    k.v.free(x,f,sm,mean,dv,rs,o,dbgv,wa,ra,z,wz,voff2,vdt,vw2,vw1,q4,lq,ilq,sh,s2,e1,e2)
    k('s_mov_b32 s30, 0xffff0000')
    w2w=k.v.alloc(); w2r=k.v.alloc()
    k(f'v_lshrrev_b32 v{t0}, 4, v0')
    k(f'v_and_b32 v{t1}, 15, v0')
    k(f'v_mul_u32_u24 v{w2w}, 288, v{t0}')
    k(f'v_lshl_add_u32 v{w2w}, v{t1}, 4, v{w2w}')
    k(f'v_add_u32 v{w2w}, {W2S}, v{w2w}')
    k(f'ds_write_b128 v{w2w}, {V(xw[0],4)}')
    k(f'ds_write_b128 v{w2w}, {V(xw[1],4)} offset:{16*288}')
    k(f'v_lshrrev_b32 v{t0}, 2, v{lane}')
    k(f'v_mul_u32_u24 v{w2r}, 288, v{t0}')
    k(f'v_and_b32 v{t1}, 3, v{lane}')
    k(f'v_lshl_add_u32 v{w2r}, v{t1}, 3, v{w2r}')
    k(f's_lshl_b32 s26, s{S_WAVE}, 6'); k(f's_add_u32 s26, s26, {W2S}')
    k(f'v_add_u32 v{w2r}, s26, v{w2r}')
    Lhi,Llo=f32split(LOG2E)
    k(f's_mov_b32 s24, {f32hex(Lhi)}')
    k(f's_mov_b32 s25, {f32hex(Llo)}')
    k(f's_mov_b32 s26, {f32hex(0.6931471805599453)}')
    k(f's_mov_b32 s27, {f32hex(0.15915494309189535)}')
    k(f'v_lshlrev_b32 v{dt}, 16, v{dt}')
    for i in range(4): k(f'v_lshlrev_b32 v{p[i]}, 16, v{p[i]}')
    zr,zi,cr,ci=p
    t4=k.v.alloc()
    k(f'v_mul_f32 v{t0}, s24, v{dt}')
    k(f'v_mul_f32 v{t3}, s24, v{zr}')
    k(f'v_fma_f32 v{t1}, v{dt}, s24, -v{t0}')
    k(f'v_fma_f32 v{t4}, v{zr}, s24, -v{t3}')
    k(f'v_fmac_f32 v{t1}, s25, v{dt}')
    k(f'v_fmac_f32 v{t4}, s25, v{zr}')
    k(f'v_exp_f32 v{t0}, v{t0}')
    k(f'v_exp_f32 v{t3}, v{t3}')
    k(f'v_mul_f32 v{t1}, s26, v{t1}')
    k(f'v_mul_f32 v{t4}, s26, v{t4}')
    k(f'v_fma_f32 v{t0}, v{t0}, v{t1}, v{t0}')
    k(f'v_fma_f32 v{t3}, v{t3}, v{t4}, v{t3}')
    k(f'v_cvt_pk_bf16_f32 v{dt}, v{t0}, v{t3}')
    k(f'v_and_b32 v{zr}, s30, v{dt}')
    k(f'v_lshlrev_b32 v{dt}, 16, v{dt}')
    k(f'v_mul_f32 v{zr}, v{zr}, v{dt}')
    k(f'v_mul_f32 v{zi}, v{zi}, v{dt}')
    k(f'v_mul_f32 v{cr}, v{cr}, v{dt}')
    k(f'v_mul_f32 v{ci}, v{ci}, v{dt}')
    k(f'v_mul_f32 v{zr}, s24, v{zr}')
    k(f'v_mul_f32 v{zi}, s27, v{zi}')
    k('s_waitcnt lgkmcnt(0)')
    k('s_barrier')
    vm=VM(k)
    fw=[k.v.alloc(4,4),k.v.alloc(4,4)]
    for jj in range(2):
        for rr in range(2):
            k(f'ds_read_b64_tr_b16 {V(fw[jj]+2*rr,2)}, v{w2r} offset:{jj*32+rr*16*288}')
    def cexp(mult):
        r=k.v.alloc(2,2)
        k(f's_mov_b32 s24, {f32hex(float(-mult))}')
        k(f's_mov_b32 s25, {f32hex(float(mult))}')
        k(f'v_mul_f32 v{t0}, s24, v{zr}')
        k(f'v_mul_f32 v{t1}, s25, v{zi}')
        k(f'v_exp_f32 v{t0}, v{t0}')
        k(f'v_fract_f32 v{t1}, v{t1}')
        k(f'v_cos_f32 v{r}, v{t1}')
        k(f'v_sin_f32 v{r+1}, v{t1}')
        k(f'v_mul_f32 v{r}, v{r}, v{t0}')
        k(f'v_mul_f32 v{r+1}, v{r+1}, v{t0}')
        n=k.v.alloc(2,2)
        k(f'v_sub_f32 v{n}, 0, v{r+1}')
        k(f'v_mov_b32 v{n+1}, v{r}')
        return r,n
    W=cexp(64); w1=cexp(1); w2=cexp(2)
    k('s_lshl_b32 s26, s5, 1'); k(f's_add_u32 s26, s26, s{S_C}')
    k(f's_mul_i32 s26, s26, {56*4096}')
    k('s_lshl_b32 s27, s4, 12'); k('s_add_u32 s26, s26, s27')
    k(f's_lshl_b32 s27, s{S_HD}, 11'); k('s_add_u32 s26, s26, s27'); k(f's_add_u32 s26, s26, {WS_W2F}')
    for jj in range(2):
        k(f's_waitcnt lgkmcnt({2*(1-jj)})')
        if not nowst: vm.issue(f'buffer_store_dwordx4 {V(fw[jj],4)}, v{vl}, {sr4(WS)}, s26 offen offset:{jj*1024} sc1','w2s')
    k.v.free(xv,ve2,xw,fw,w2w,w2r)
    ST('k_w')
    kwa=k.v.alloc()
    k(f's_mul_i32 s31, s{S_C}, {KCH}')
    k(f's_mul_i32 s26, s{S_HD}, {64*KRS}'); k('s_add_u32 s26, s26, s31')
    k(f'v_mul_u32_u24 v{kwa}, {KRS}, v{lane}')
    k(f'v_add_u32 v{kwa}, s26, v{kwa}')
    xa=[k.v.alloc(2,2) for _ in range(8)]; xb=[k.v.alloc(2,2) for _ in range(8)]; od=[k.v.alloc(2,2) for _ in range(4)]
    pq=[k.v.alloc(4,4) for _ in range(4)]
    def cmul1(d,x_,w): k(f'v_pk_mul_f32 {V(d,2)}, {V(w[0],2)}, {V(x_,2)} op_sel:[0,0] op_sel_hi:[1,0]')
    def cmul2(d,x_,w): k(f'v_pk_fma_f32 {V(d,2)}, {V(w[1],2)}, {V(x_,2)}, {V(d,2)} op_sel:[0,1,0] op_sel_hi:[1,1,1]')
    def pack(vals,off,neg,qr,qi):
        sg='-' if neg else ''
        for j in range(4):
            k(f'v_cvt_pk_bf16_f32 v{qr+j}, v{vals[2*j]}, v{vals[2*j+1]}')
        for j in range(4):
            k(f'v_cvt_pk_bf16_f32 v{qi+j}, {sg}v{vals[2*j]+1}, {sg}v{vals[2*j+1]+1}')
        k(f'ds_write_b128 v{kwa}, {V(qr,4)} offset:{off}')
        k(f'ds_write_b128 v{kwa}, {V(qi,4)} offset:{off+KPL}')
    k(f'v_add_f32 v{xa[0]}, v{cr}, v{cr}')
    k(f'v_add_f32 v{xa[0]+1}, v{ci}, v{ci}')
    k(f'v_mov_b32 v{xb[0]}, 1.0'); k(f'v_mov_b32 v{xb[0]+1}, 0')
    for G in range(4):
        if G>0:
            cmul1(xa[0],xa[7],W); cmul1(xb[0],xb[7],w2); cmul2(xa[0],xa[7],W); cmul2(xb[0],xb[7],w2)
        for i in range(1,8):
            cmul1(xa[i],xa[i-1],W); cmul1(xb[i],xb[i-1],w2)
            if G==0 and i<=4: cmul1(od[i-1],xa[i-1],w1)
            cmul2(xa[i],xa[i-1],W); cmul2(xb[i],xb[i-1],w2)
            if G==0 and i<=4: cmul2(od[i-1],xa[i-1],w1)
        pack(xa,16*G,True,pq[0],pq[1])
        pack(xb,80+16*G,False,pq[2],pq[3])
    cmul1(xa[0],xa[7],W); cmul2(xa[0],xa[7],W)
    pack([xa[0],od[0],od[1],od[2],od[3],od[3],od[3],od[3]],64,True,pq[0],pq[1])
    k.v.free(xa,xb,od,kwa,list(W),list(w1),list(w2),p,dt,t4,pq)
    ST('k_chain')
    k('s_waitcnt lgkmcnt(0)')
    k('s_barrier')
    ST('k_bar')
    if codepf: k.v.free(cp0)
    vK=k.v.alloc(); vKb=k.v.alloc()
    k(f'v_lshrrev_b32 v{t0}, 2, v{lane}')
    k(f'v_mul_u32_u24 v{vK}, {KRS}, v{t0}')
    k(f'v_and_b32 v{t1}, 3, v{lane}')
    k(f'v_lshl_add_u32 v{vK}, v{t1}, 3, v{vK}')
    k(f'v_add_u32 v{vK}, s31, v{vK}')
    k(f's_lshl_b32 s26, s{S_HD}, 5'); k('s_add_u32 s26, s26, 80')
    k(f'v_add_u32 v{vKb}, s26, v{vK}')
    kacc=[k.v.alloc(4,4) for _ in range(3)]
    for a in kacc:
        for r in range(4): k(f'v_mov_b32 v{a+r}, 0')
    fa=[[k.v.alloc(4,4) for _ in range(3)] for _ in range(2)]
    fb=[k.v.alloc(4,4) for _ in range(2)]
    def kld(ks):
        s=ks&1; base=(ks>>2)*KPL+32*(ks&3)*KRS; out=[]
        for rr in range(2): out.append(f'ds_read_b64_tr_b16 {V(fb[s]+2*rr,2)}, v{vKb} offset:{base+16*rr*KRS}')
        for at in range(3):
            for rr in range(2): out.append(f'ds_read_b64_tr_b16 {V(fa[s][at]+2*rr,2)}, v{vK} offset:{base+16*rr*KRS+32*at}')
        return out
    c0v=k.v.alloc()
    for l in kld(0): k(l)
    for ks in range(8):
        k('s_waitcnt lgkmcnt(0)')
        nx_=kld(ks+1) if ks<7 else []
        s=ks&1
        for at in range(3):
            for l in nx_[3*at:3*at+3]: k(l)
            k(f'v_mfma_f32_16x16x32_bf16 {V(kacc[at],4)}, {V(fb[s],4)}, {V(fa[s][at],4)}, {V(kacc[at],4)}')
        if ks==5: wave0(lambda: k(f'buffer_load_dword v{c0v}, v{vpl}, {sr4(WS)}, 0 offen sc1'))
    ST('k_mfma')
    ta=k.v.alloc()
    k(f'v_and_b32 v{t0}, 15, v{lane}')
    k(f'v_lshlrev_b32 v{ta}, 6, v{t0}')
    k(f'v_lshrrev_b32 v{t1}, 4, v{lane}')
    k(f'v_lshl_add_u32 v{ta}, v{t1}, 3, v{ta}')
    k(f's_lshl_b32 s26, s{S_HD}, 5'); k('s_add_u32 s26, s26, s31')
    k(f'v_add_u32 v{ta}, s26, v{ta}')
    tq=[k.v.alloc(2,2) for _ in range(3)]
    for at in range(3):
        for h in range(2): k(f'v_cvt_pk_bf16_f32 v{tq[at]+h}, v{kacc[at]+2*h}, v{kacc[at]+2*h+1}')
    k('s_barrier')
    for at in range(3): k(f'ds_write_b64 v{ta}, {V(tq[at],2)} offset:{at*1024}')
    k(f'v_mov_b32 v{t0}, 0'); k(f'v_mov_b32 v{t1}, s31')
    k(f'ds_write_b32 v{t1}, v{t0} offset:3072')
    g=[k.v.alloc() for _ in range(9)]
    k('s_waitcnt vmcnt(0)')
    for i in range(4):
        k(f'v_and_b32 v{g[2*i]}, 0xffff, v{tb+i}')
        k(f'v_lshrrev_b32 v{g[2*i+1]}, 16, v{tb+i}')
    k(f'v_mov_b32 v{g[8]}, v{tb9}')
    def c0check():
        lok=k.lab('c0ok')
        k('s_waitcnt vmcnt(0)')
        k(f'v_cmp_gt_u32 vcc, 16, v{lane}')
        k('s_and_saveexec_b64 s[6:7], vcc')
        k(f'v_cmp_gt_u32 vcc, 16, v{c0v}')
        k('s_mov_b64 exec, s[6:7]')
        k(f's_cbranch_vccz {lok}')
        poll(vpl,16,16,lane,t0)
        k.label(lok)
    ST('a_prepoll')
    wave0(c0check)
    ST('a_poll')
    k.v.free(tb,tb9,kacc,fa[0],fa[1],fb,vK,vKb,ta,tq,c0v)
    k('s_waitcnt lgkmcnt(0)')
    k('s_barrier')
    ST('a_bar')
    vm=VM(k)
    vlx=k.v.alloc(); wl=k.v.alloc()
    k(f'v_lshrrev_b32 v{t0}, 2, v0')
    k(f'v_lshlrev_b32 v{vlx}, 14, v{t0}')
    k(f'v_and_b32 v{t1}, 3, v0')
    k(f'v_lshl_add_u32 v{vlx}, v{t1}, 4, v{vlx}')
    k(f's_lshl_b32 s26, s{S_D0}, 5'); k(f's_add_u32 s26, s26, {WS_XL}')
    xc=[k.v.alloc(4,4) for _ in range(4)]
    for i in range(4):
        if i: k(f's_add_u32 s26, s26, {64*16384}')
        vm.issue(f'buffer_load_dwordx4 {V(xc[i],4)}, v{vlx}, {sr4(WS)}, s26 offen sc1',f'X{i}')
    k(f'v_bfe_u32 v{t2}, v0, 1, 1')
    k(f'v_mul_u32_u24 v{wl}, {CHB}, v{t2}')
    k(f'v_lshl_add_u32 v{wl}, v{t0}, 4, v{wl}')
    k(f'v_and_b32 v{t2}, 1, v0')
    k(f'v_mul_u32_u24 v{t2}, {XO-LO}, v{t2}')
    k(f'v_sub_u32 v{wl}, v{wl}, v{t2}')
    k(f'v_add_u32 v{wl}, {RB+XO}, v{wl}')
    ge=k.v.alloc()
    k(f'v_add_u32 v{ge}, {RB}, v{vt16}')
    gl=[k.v.alloc(9) for _ in range(2)]
    for i in range(9):
        k(f'ds_read_u16 v{gl[0]+i}, v{g[i]}')
    eo=[k.v.alloc(4,4),k.v.alloc(4,4)]
    for c in range(2):
        k('s_waitcnt lgkmcnt(0)')
        if c==0:
            for i in range(9): k(f'ds_read_u16 v{gl[1]+i}, v{g[i]} offset:{KCH}')
        for i in range(4): k(f'v_lshl_or_b32 v{eo[0]+i}, v{gl[c]+2*i+1}, 16, v{gl[c]+2*i}')
        for i in range(4): k(f'v_lshl_or_b32 v{eo[1]+i}, v{gl[c]+2*i+2}, 16, v{gl[c]+2*i+1}')
        k(f'ds_write_b128 v{ge}, {V(eo[0],4)} offset:{c*CHB+EO}')
        k(f'ds_write_b128 v{ge}, {V(eo[1],4)} offset:{c*CHB+OO}')
    k.v.free(g,gl,eo,ge,vt16,vlx)
    srd(k,T0,P_W1,0,D*F*2)
    vw1=[k.v.alloc() for _ in range(7)]
    k('s_mov_b32 s24, 4682')
    for b in range(7):
        k(f'v_add_u32 v{t0}, {64*b}, v{lane}')
        k(f'v_mul_u32_u24 v{t1}, s24, v{t0}')
        k(f'v_lshrrev_b32 v{t1}, 16, v{t1}')
        k(f'v_mul_u32_u24 v{t3}, 14, v{t1}')
        k(f'v_sub_u32 v{t3}, v{t0}, v{t3}')
        k(f'v_mul_u32_u24 v{t1}, {F*2}, v{t1}')
        k(f'v_lshl_add_u32 v{t3}, v{t3}, 4, v{t1}')
        k(f'v_subrev_u32 v{vw1[b]}, {(b%4)*1024}, v{t3}')
    k(f's_mul_i32 s24, s{S_WAVE}, 7168')
    k(f's_mul_i32 s25, s{S_WAVE}, {32*F*2}'); k(f's_mul_i32 s28, s{S_NT}, 224'); k('s_add_u32 s25, s25, s28')
    w1q=[(i,b) for i in range(4) for b in range(7)]
    def w1dma(n):
        i,b=w1q[n]
        if b in (0,4): k(f's_add_u32 m0, s24, {i*28672+b*1024}')
        if b==0: k(f's_add_u32 s28, s25, {i*4*32*F*2}')
        vm.issue(f'buffer_load_dwordx4 v{vw1[b]}, {sr4(T0)}, s28 offen offset:{(b%4)*1024} lds','W1')
    vB=k.v.alloc(); vA=[k.v.alloc() for _ in range(4)]
    k(f's_mul_i32 s30, s{S_C}, {CHB}'); k(f's_add_u32 s30, s30, {RB}')
    k(f's_lshl_b32 s31, s{S_HD}, 8')
    k(f'v_and_b32 v{t0}, 15, v{lane}')
    k(f'v_lshrrev_b32 v{t1}, 4, v{lane}')
    k(f'v_lshlrev_b32 v{vB}, 5, v{t0}')
    k(f'v_lshl_add_u32 v{vB}, v{t1}, 4, v{vB}')
    k(f's_sub_u32 s26, s30, s31')
    k(f's_add_u32 s27, s26, {LO-32-192}')
    k(f'v_add_u32 v{vB}, s27, v{vB}')
    k(f'v_sub_u32 v{t2}, 2031, v{t0}')
    k(f'v_lshrrev_b32 v{t2}, 1, v{t2}')
    k(f'v_lshlrev_b32 v{t2}, 2, v{t2}')
    k(f'v_lshl_add_u32 v{t2}, v{t1}, 4, v{t2}')
    k(f'v_and_b32 v{t0}, 1, v{t0}')
    k(f'v_mul_u32_u24 v{t0}, {OO-EO}, v{t0}')
    k(f'v_sub_u32 v{t2}, v{t2}, v{t0}')
    k(f's_add_u32 s27, s26, {OO-192-3584}')
    for j in range(4):
        k(f's_add_u32 s29, s27, {1024*j}')
        k(f'v_add_u32 v{vA[j]}, s29, v{t2}')
    ST('b_setup')
    for i in range(4):
        vm.wait(f'X{i}')
        k(f'ds_write_b128 v{wl}, {V(xc[i],4)} offset:{i*1024}')
    k.v.free(xc,wl)
    acc=[k.v.alloc(4,4) for _ in range(8)]
    for a in acc:
        for r in range(4): k(f'v_mov_b32 v{a+r}, 0')
    fB=[[k.v.alloc(4,4) for _ in range(8)] for _ in range(2)]
    fA=[[k.v.alloc(4,4) for _ in range(8)] for _ in range(2)]
    k('s_waitcnt lgkmcnt(0)')
    k('s_barrier')
    def loads(i):
        p_=i&1; out=[]
        for s in range(8):
            out.append(f'ds_read_b128 {V(fB[p_][s],4)}, v{vB} offset:{64*(3-i)+512*s}')
        al=[]
        for s in range(8):
            j=(7-s)//2; hi=0 if (7-2*j)==s else 128
            o_=16*(3-i)+hi
            al.append(f'ds_read2_b32 {V(fA[p_][s],2)}, v{vA[j]} offset0:{o_} offset1:{o_+1}')
            al.append(f'ds_read2_b32 {V(fA[p_][s]+2,2)}, v{vA[j]} offset0:{o_+2} offset1:{o_+3}')
        return al[:2]+out+al[2:]
    for l in loads(0): k(l)
    nw1=0
    for _ in range(2): w1dma(nw1); nw1+=1
    k('s_waitcnt lgkmcnt(0)')
    ST('b_loop0')
    cnt=0
    for i in range(4):
        p_=i&1
        nxt=loads(i+1) if i<3 else []
        n=0
        for s in range(8):
            for tp in range(8-s):
                k(f'v_mfma_f32_16x16x32_bf16 {V(acc[s+tp],4)}, {V(fA[p_][s],4)}, {V(fB[p_][tp],4)}, {V(acc[s+tp],4)}')
                cnt+=1
                if cnt%W1_EVERY==0 and nw1<28: w1dma(nw1); nw1+=1
                elif n<len(nxt): k(nxt[n]); n+=1
        while n<len(nxt): k(nxt[n]); n+=1
        if i<3: k('s_waitcnt lgkmcnt(0)')
    ST('b_loop1')
    k('s_barrier')
    pa=k.v.alloc(); pr=k.v.alloc()
    k(f's_lshl_b32 s26, s{S_HD}, 12')
    k(f's_add_u32 s27, s30, {EO}')
    k(f's_add_u32 s29, s27, s26')
    k(f'v_add_u32 v{pa}, s29, v{vl}')
    k(f's_xor_b32 s26, s26, 4096')
    k(f's_add_u32 s29, s27, s26')
    k(f'v_add_u32 v{pr}, s29, v{vl}')
    lA=k.lab('snd1'); lB=k.lab('sndx')
    k(f's_cmp_eq_u32 s{S_HD}, 0'); k(f's_cbranch_scc0 {lA}')
    for j in range(4): k(f'ds_write_b128 v{pa}, {V(acc[4+j],4)} offset:{j*1024}')
    k(f's_branch {lB}')
    k.label(lA)
    for j in range(4): k(f'ds_write_b128 v{pa}, {V(acc[j],4)} offset:{j*1024}')
    k.label(lB)
    while nw1<28: w1dma(nw1); nw1+=1
    ea=k.v.alloc(); so=k.v.alloc()
    k(f'v_and_b32 v{t0}, 15, v{lane}')
    k(f'v_lshrrev_b32 v{t1}, 4, v{lane}')
    k(f'v_lshlrev_b32 v{ea}, 5, v{t0}')
    k(f'v_lshl_add_u32 v{ea}, v{t1}, 3, v{ea}')
    k(f'v_add_u32 v{ea}, s30, v{ea}')
    k(f'v_lshrrev_b32 v{t2}, 3, v{t0}')
    k(f'v_lshlrev_b32 v{so}, 17, v{t2}')
    k(f'v_and_b32 v{t0}, 7, v{t0}')
    k(f'v_lshl_add_u32 v{so}, v{t0}, 5, v{so}')
    k(f'v_lshl_add_u32 v{so}, v{t1}, 3, v{so}')
    k(f's_lshl_b32 s29, s{S_C}, 4'); k('s_lshr_b32 s3, s3, s29'); k('s_lshl_b32 s3, s3, 16')
    k(f's_add_u32 s31, s{S_D0}, s{S_C}'); k('s_lshl_b32 s31, s31, 8'); k(f's_add_u32 s31, s31, {WS_HB}')
    k('s_mov_b32 s26, 0xffff0000')
    k('s_waitcnt lgkmcnt(0)')
    k('s_barrier')
    ST('b_exch')
    part=[fB[0][j] for j in range(4)]
    lnr=[fB[0][4+j//2]+2*(j%2) for j in range(4)]
    xr=[fB[0][6+j//2]+2*(j%2) for j in range(4)]
    T=[fA[0][0]+i for i in range(4)]+[fA[0][1]+i for i in range(4)]
    def epi(keep_):
        for j in range(4):
            k(f'ds_read_b128 {V(part[j],4)}, v{pr} offset:{j*1024}')
        for j in range(4):
            t=keep_+j
            k(f'ds_read_b64 {V(lnr[j],2)}, v{ea} offset:{LO+512*t}')
            k(f'ds_read_b64 {V(xr[j],2)}, v{ea} offset:{XO+512*t}')
        k('s_waitcnt lgkmcnt(0)')
        for j in range(4):
            t=keep_+j; a=acc[t]
            for h in range(2): k(f'v_pk_add_f32 {V(a+2*h,2)}, {V(a+2*h,2)}, {V(part[j]+2*h,2)}')
            for h in range(2):
                y0=a+2*h; y1=y0+1; l=lnr[j]+h; x_=xr[j]+h
                a0,a1,b0,b1_=T[0],T[1],T[2],T[3]
                k(f'v_lshlrev_b32 v{a0}, 16, v{l}')
                k(f'v_and_b32 v{a1}, s26, v{l}')
                if mimic:
                    k(f'v_mul_f32 v{a0}, s3, v{a0}')
                    k(f'v_mul_f32 v{a1}, s3, v{a1}')
                    k(f'v_cvt_pk_bf16_f32 v{b0}, v{a0}, v{a1}')
                    k(f'v_cvt_pk_bf16_f32 v{b1_}, v{y0}, v{y1}')
                    k(f'v_lshlrev_b32 v{a0}, 16, v{b0}')
                    k(f'v_and_b32 v{a1}, s26, v{b0}')
                    k(f'v_lshlrev_b32 v{y0}, 16, v{b1_}')
                    k(f'v_and_b32 v{y1}, s26, v{b1_}')
                    k(f'v_add_f32 v{a0}, v{a0}, v{y0}')
                    k(f'v_add_f32 v{a1}, v{a1}, v{y1}')
                    k(f'v_cvt_pk_bf16_f32 v{b0}, v{a0}, v{a1}')
                    k(f'v_lshlrev_b32 v{a0}, 16, v{b0}')
                    k(f'v_and_b32 v{a1}, s26, v{b0}')
                else:
                    k(f'v_fma_f32 v{a0}, v{a0}, s3, v{y0}')
                    k(f'v_fma_f32 v{a1}, v{a1}, s3, v{y1}')
                k(f'v_lshlrev_b32 v{b0}, 16, v{x_}')
                k(f'v_and_b32 v{b1_}, s26, v{x_}')
                k(f'v_add_f32 v{a0}, v{a0}, v{b0}')
                k(f'v_add_f32 v{a1}, v{a1}, v{b1_}')
                k(f'v_cvt_pk_bf16_f32 v{T[4+(j&1)*2+h]}, v{a0}, v{a1}')
            k(f's_add_u32 s27, s31, {t*262144}')
            k(f'buffer_store_dwordx2 {V(T[4+(j&1)*2],2)}, v{so}, {sr4(WS)}, s27 offen sc1')
    lC=k.lab('epi1'); lD=k.lab('epid')
    k(f's_cmp_eq_u32 s{S_HD}, 0'); k(f's_cbranch_scc0 {lC}')
    epi(0); k(f's_branch {lD}')
    k.label(lC); epi(4)
    k.label(lD)
    k.v.release(base_mark)
    t0=k.v.alloc(); t1=k.v.alloc(); t2=k.v.alloc(); t3=k.v.alloc()
    ST('b_epi')
    k('s_waitcnt vmcnt(0)')
    ST('b_ack')
    k('s_barrier')
    def arr1():
        k(f'v_add_u32 v{t1}, {C1}, v{vsh}')
        arrive(t1,lane,t0)
    waveA(arr1)
    ST('b_arrive')
    vm=VM(k)
    cs=[k.v.alloc(4,4) for _ in range(7)]; b1=[k.v.alloc(4,4) for _ in range(7)]
    vq=k.v.alloc()
    srd(k,T1,P_B1,0,F*2)
    k(f'v_lshrrev_b32 v{t0}, 4, v{lane}')
    k(f'v_lshlrev_b32 v{vq}, 3, v{t0}')
    k(f's_mul_i32 s24, s{S_NT}, 224')
    k(f's_lshl_b32 s25, s{S_PAR}, 5')
    k('s_add_u32 s26, s24, s25')
    k(f's_mul_i32 s27, s{S_PAR}, 192'); k('s_sub_u32 s27, 192, s27'); k('s_add_u32 s27, s27, s24')
    for j in range(7):
        if j<6: vm.issue(f'buffer_load_dwordx2 {V(b1[j]+2,2)}, v{vq}, {sr4(T1)}, s26 offen offset:{32*j}','b1')
        else: vm.issue(f'buffer_load_dwordx2 {V(b1[j]+2,2)}, v{vq}, {sr4(T1)}, s27 offen','b1')
    lcp=k.lab('cp'); lpc=k.lab('pc')
    cpv=k.v.alloc(4,4); cpa=k.v.alloc()
    k(f's_cmp_eq_u32 s{S_WAVE}, 1'); k(f's_cbranch_scc0 {lcp}')
    k('s_getpc_b64 s[28:29]'); k.label(lpc)
    k('s_lshr_b32 s24, s2, 3'); k('s_lshl_b32 s24, s24, 10')
    k(f'v_add_u32 v{cpa}, s24, v{vl}')
    k(f's_mov_b32 s24, {name}_codeend-{lpc}-16')
    k(f'v_min_u32 v{cpa}, s24, v{cpa}')
    k(f'global_load_dwordx4 {V(cpv,4)}, v{cpa}, s[28:29]')
    k.label(lcp)
    ST('w_b1')
    k(f's_mul_i32 s34, s{S_DT}, {56*4096}'); k(f's_mul_i32 s35, s{S_WAVE}, {14*4096}'); k('s_add_u32 s34, s34, s35'); k(f's_add_u32 s34, s34, {WS_W2F}')
    nw2=[0]
    def w2load():
        n=nw2[0]; nw2[0]+=1
        kk_,j=n//4,n%4
        if j==0: k(f's_add_u32 s35, s34, {kk_*4096}')
        vm.issue(f'buffer_load_dwordx4 {Ac(4*n,4)}, v{vl}, {sr4(WS)}, s35 offen offset:{j*1024} {w2sc}','W2')
    vh=[k.v.alloc(),k.v.alloc()]
    for q in range(2):
        k(f'v_lshrrev_b32 v{t0}, 4, v{lane}')
        k(f'v_add_u32 v{t1}, {4*q}, v{t0}')
        k(f'v_bfe_u32 v{t2}, v{lane}, 1, 3')
        k(f'v_xor_b32 v{t1}, v{t1}, v{t2}')
        k(f'v_lshlrev_b32 v{t1}, 5, v{t1}')
        k(f'v_lshl_add_u32 v{t1}, v{t0}, 8, v{t1}')
        k(f'v_and_b32 v{t2}, 1, v{lane}')
        k(f'v_lshl_add_u32 v{vh[q]}, v{t2}, 4, v{t1}')
    k(f's_lshl_b32 s24, s{S_MT}, 17')
    k(f's_lshl_b32 s25, s{S_WAVE}, 12')
    k('s_add_u32 s24, s24, s25'); k(f's_add_u32 s24, s24, {WS_HB}')
    k(f's_add_u32 s25, s25, {RB}')
    def dma1(ch,q):
        sb=(ch%3)*16384
        if q==0:
            k(f's_add_u32 m0, s25, {sb}')
            k(f's_add_u32 s27, s24, {ch*16384}')
        vm.issue(f'buffer_load_dwordx4 v{vh[q&1]}, {sr4(WS)}, s27 offen offset:{q*1024} sc1 lds',f'h{ch}')
    def dma(ch):
        for q in range(4): dma1(ch,q)
    vH=[k.v.alloc() for _ in range(2)]
    vT=[k.v.alloc() for _ in range(2)]
    k(f'v_lshrrev_b32 v{t0}, 2, v{lane}')
    k(f'v_and_b32 v{t1}, 7, v{t0}')
    k(f'v_and_b32 v{t3}, 3, v{lane}')
    k(f'v_lshlrev_b32 v{t3}, 3, v{t3}')
    k(f's_lshl_b32 s26, s{S_WAVE}, 1')
    for c in range(2):
        k(f's_add_u32 s27, s26, {c}')
        k(f'v_xor_b32 v{t2}, s27, v{t1}')
        k(f'v_lshlrev_b32 v{t2}, 5, v{t2}')
        k(f'v_lshl_add_u32 v{t2}, v{t0}, 8, v{t2}')
        k(f'v_add_u32 v{t2}, v{t2}, v{t3}')
        k(f'v_add_u32 v{vH[c]}, {RB}, v{t2}')
    vWa=[k.v.alloc(),k.v.alloc()]; vWb=[k.v.alloc(),k.v.alloc()]; vrow=k.v.alloc()
    k(f'v_mul_u32_u24 v{vrow}, 224, v{t0}')
    k(f'v_add_u32 v{vrow}, v{vrow}, v{t3}')
    k(f's_lshl_b32 s26, s{S_PAR}, 5')
    k(f'v_add_u32 v{vWa[0]}, s26, v{vrow}')
    k(f's_mul_i32 s26, s{S_PAR}, 192'); k(f's_sub_u32 s26, 192, s26')
    k(f'v_add_u32 v{vWb[0]}, s26, v{vrow}')
    k(f'v_add_u32 v{vWa[1]}, {8*7168}, v{vWa[0]}')
    k(f'v_add_u32 v{vWb[1]}, {8*7168}, v{vWb[0]}')
    acc=[[k.v.alloc(4,4) for _ in range(2)] for _ in range(7)]
    ssum=[k.v.alloc(4,4) for _ in range(2)]; ssq=[k.v.alloc(4,4) for _ in range(2)]
    ones=k.v.alloc(4,4)
    k('s_mov_b32 s26, 0x3f803f80')
    for r in range(4): k(f'v_mov_b32 v{ones+r}, s26')
    fH=[[k.v.alloc(4,4) for _ in range(2)] for _ in range(2)]
    fW=[[k.v.alloc(4,4) for _ in range(7)] for _ in range(2)]
    def readsW(s):
        p_=s&1; st=s//8; sb=(s%8)*7168; out=[]
        for j in range(7):
            for rr in range(2):
                if j<6: out.append(f'ds_read_b64_tr_b16 {V(fW[p_][j]+2*rr,2)}, v{vWa[st]} offset:{sb+rr*3584+32*j}')
                else: out.append(f'ds_read_b64_tr_b16 {V(fW[p_][j]+2*rr,2)}, v{vWb[st]} offset:{sb+rr*3584}')
        return out
    def readsH(s):
        ch=s>>1; ks=s&1; sb=(ch%3)*16384; p_=s&1; out=[]
        for c in range(2):
            for rr in range(2):
                out.append(f'ds_read_b64_tr_b16 {V(fH[p_][c]+2*rr,2)}, v{vH[c]} offset:{sb+(32*ks+16*rr)*256}')
        return out
    vS=[[k.v.alloc() for _ in range(2)] for _ in range(2)]
    k(f's_add_u32 s27, s{S_WAVE}, 4'); k('s_min_u32 s27, s27, 6')
    for idx,sj in ((0,S_WAVE),(1,27)):
        k(f's_add_u32 s26, s{sj}, s{S_PAR}'); k('s_cmp_eq_u32 s26, 7'); k('s_cselect_b32 s26, 0, s26'); k('s_lshl_b32 s26, s26, 5')
        k(f'v_add_u32 v{vS[idx][0]}, s26, v{vrow}')
        k(f'v_add_u32 v{vS[idx][1]}, {8*7168}, v{vS[idx][0]}')
    for idx in range(2):
        for r in range(4): k(f'v_mov_b32 v{cs[idx]+r}, 0')
    ST('w_addr')
    def csread(s_):
        return [f'ds_read_b64_tr_b16 {V(fW[(s_//2)&1][2*(s_&1)+idx]+2*rr,2)}, v{vS[idx][s_//8]} offset:{(s_%8)*7168+rr*3584}' for idx in range(2) for rr in range(2)]
    for s_ in range(2):
        for l in csread(s_): k(l)
    for g_ in range(8):
        nx=(csread(2*g_+2)+csread(2*g_+3)) if g_<7 else []
        k('s_waitcnt lgkmcnt(0)')
        for l in nx: k(l)
        for s_ in (2*g_,2*g_+1):
            for idx in range(2):
                k(f'v_mfma_f32_16x16x32_bf16 {V(cs[idx],4)}, {V(fW[g_&1][2*(s_&1)+idx],4)}, {V(ones,4)}, {V(cs[idx],4)}')
        for _ in range(3):
            if nw2[0]<W2_EARLY: w2load()
    for a in sum(acc,[])+ssum+ssq:
        for r in range(4): k(f'v_mov_b32 v{a+r}, 0')
    k(f's_lshl_b32 s26, s{S_WAVE}, 10'); k(f's_add_u32 s26, s26, {RB}')
    k(f'v_add_u32 v{vT[0]}, s26, v{vl}')
    k(f's_lshl_b32 s26, s27, 10'); k(f's_add_u32 s26, s26, {RB}')
    k(f'v_add_u32 v{vT[1]}, s26, v{vl}')
    k(f'ds_write_b128 v{vT[0]}, {V(cs[0],4)}')
    k(f'ds_write_b128 v{vT[1]}, {V(cs[1],4)}')
    ST('w_tr')
    while nw2[0]<W2_EARLY: w2load()
    k(f'v_and_b32 v{vT[1]}, 48, v{lane}')
    k(f'v_lshlrev_b32 v{vT[1]}, 4, v{vT[1]}')
    k(f'v_add_u32 v{vT[1]}, {RB}, v{vT[1]}')
    k('s_waitcnt lgkmcnt(0)')
    k('s_barrier')
    for j in range(7):
        k(f'ds_read_b128 {V(cs[j],4)}, v{vT[1]} offset:{j*1024}')
    for l in readsW(0): k(l)
    k.v.free(vS[0],vS[1],vrow)
    ST('w_cs')
    vm.wait('b1')
    ST('w_b1w')
    for j in range(7):
        k(f'v_lshlrev_b32 v{b1[j]}, 16, v{b1[j]+2}')
        k(f'v_and_b32 v{b1[j]+1}, 0xffff0000, v{b1[j]+2}')
        k(f'v_lshlrev_b32 v{b1[j]+2}, 16, v{b1[j]+3}')
        k(f'v_and_b32 v{b1[j]+3}, 0xffff0000, v{b1[j]+3}')
    rs_l=RB+2*16384
    vr=k.v.alloc()
    k(f'v_lshrrev_b32 v{t0}, 1, v{lane}')
    k(f'v_lshlrev_b32 v{vr}, 8, v{t0}')
    k(f'v_and_b32 v{t1}, 1, v{lane}')
    k(f'v_lshl_add_u32 v{vr}, v{t1}, 4, v{vr}')
    k(f's_lshl_b32 s4, s{S_MT}, 17')
    k(f's_lshl_b32 s5, s{S_DT}, 14'); k('s_add_u32 s4, s4, s5')
    k(f's_and_b32 s5, s{S_LT}, 1'); k('s_lshl_b32 s5, s5, 7'); k('s_add_u32 s4, s4, s5')
    k(f's_lshl_b32 s5, s{S_WAVE}, 5'); k('s_add_u32 s4, s4, s5'); k(f's_add_u32 s4, s4, {WS_HB}')
    k(f's_lshl_b32 s5, s{S_WAVE}, 11'); k(f's_add_u32 s5, s5, {rs_l}')
    ST('c_setup')
    def wait1():
        k(f'v_add_u32 v{t1}, {C1}, v{vpl}')
        poll(t1,16,16,lane,t0)
    wave0(wait1)
    k('s_waitcnt vmcnt(0) lgkmcnt(0)')
    k('s_barrier')
    ST('c_bar')
    vm=VM(k)
    dma(0); dma(1)
    vm.wait('h0')
    k('s_barrier')
    ST('c_h0')
    for l in readsH(0): k(l)
    dma(2)
    def resdma(q):
        k(f's_add_u32 m0, s5, {q*1024}')
        k(f's_add_u32 s27, s4, {q*32*256}')
        vm.issue(f'buffer_load_dwordx4 v{vr}, {sr4(WS)}, s27 offen sc1 lds','res')
    for s in range(16):
        p_=s&1
        k('s_waitcnt lgkmcnt(0)')
        ST(f'c_s{s}')
        side=[]; nxt=[]
        if s<15:
            if (s+1)%2==0:
                c1=(s+1)//2
                vm.wait(f'h{c1}')
                k('s_barrier')
                if c1+2<=7: side=[(lambda q=q,c=c1+2: dma1(c,q)) for q in range(4)]
                elif c1==6: side=[(lambda q=q: resdma(q)) for q in range(2)]
            nxt=readsH(s+1)+readsW(s+1)
        if not side:
            side=[w2load]*min(4,56-nw2[0])
        slots={2:0,6:1,10:2,14:3} if len(side)==4 else {2:0,8:1,14:2}
        mf=[]
        for c in range(2):
            mf.append(f'v_mfma_f32_16x16x32_bf16 {V(ssum[c],4)}, {V(ones,4)}, {V(fH[p_][c],4)}, {V(ssum[c],4)}')
            mf.append(f'v_mfma_f32_16x16x32_bf16 {V(ssq[c],4)}, {V(fH[p_][c],4)}, {V(fH[p_][c],4)}, {V(ssq[c],4)}')
        for j in range(7):
            for c in range(2):
                mf.append(f'v_mfma_f32_16x16x32_bf16 {V(acc[j][c],4)}, {V(fW[p_][j],4)}, {V(fH[p_][c],4)}, {V(acc[j][c],4)}')
        n=0
        for mi,m in enumerate(mf):
            k(m)
            if mi in slots and slots[mi]<len(side): side[slots[mi]]()
            else:
                for _ in range(2 if mi<6 else 1):
                    if n<len(nxt): k(nxt[n]); n+=1
        while n<len(nxt): k(nxt[n]); n+=1
    ST('c_main')
    sel=k.v.alloc(); bp=k.v.alloc()
    rstd=[k.v.alloc(2,2) for _ in range(2)]; nmr=[k.v.alloc(2,2) for _ in range(2)]
    k(f'v_and_b32 v{t0}, 15, v{lane}')
    k(f'v_lshrrev_b32 v{t1}, 2, v{t0}')
    k(f'v_lshl_add_u32 v{bp}, v{t1}, 4, v{t0}')
    k(f'v_lshlrev_b32 v{bp}, 2, v{bp}')
    k(f'v_and_b32 v{sel}, 3, v{t0}')
    k('s_mov_b32 s24, 0xffff0000')
    k(f's_mov_b32 s25, {f32hex(1.0/512)}')
    k(f's_mov_b32 s26, {f32hex(1e-5)}')
    for c in range(2):
        q=ssq[c]
        k(f'v_cmp_eq_u32 vcc, 1, v{sel}')
        k(f'v_cndmask_b32 v{q}, v{q}, v{q+1}, vcc')
        k(f'v_cmp_eq_u32 vcc, 2, v{sel}')
        k(f'v_cndmask_b32 v{q}, v{q}, v{q+2}, vcc')
        k(f'v_cmp_eq_u32 vcc, 3, v{sel}')
        k(f'v_cndmask_b32 v{q}, v{q}, v{q+3}, vcc')
        k(f'ds_bpermute_b32 v{q+1}, v{bp}, v{q}')
    k('s_waitcnt lgkmcnt(0)')
    for c in range(2):
        m=ssum[c]; q=ssq[c]+1
        k(f'v_mul_f32 v{m}, s25, v{m}')
        k(f'v_mul_f32 v{q}, s25, v{q}')
        k(f'v_fma_f32 v{q}, -v{m}, v{m}, v{q}')
        k(f'v_max_f32 v{q}, 0, v{q}')
        rb(q,q,'s24')
        k(f'v_add_f32 v{q}, s26, v{q}')
        rb(q,q,'s24')
        k(f'v_sqrt_f32 v{q}, v{q}')
        rb(q,q,'s24')
        k(f'v_rcp_f32 v{rstd[c]}, v{q}')
        rb(m,m,'s24')
        k(f'v_mul_f32 v{nmr[c]}, v{m}, v{rstd[c]}')
        k(f'v_sub_f32 v{nmr[c]}, 0, v{nmr[c]}')
    ST('c_stats')
    c0=math.sqrt(2/math.pi)
    k1c=-2*c0*LOG2E; k3c=k1c*0.044715
    kc1=ones; one=ones+2
    k(f's_mov_b32 s28, {f32hex(k3c)}'); k(f's_mov_b32 s29, {f32hex(k3c)}')
    k(f'v_mov_b32 v{kc1}, {f32hex(k1c)}'); k(f'v_mov_b32 v{kc1+1}, {f32hex(k1c)}')
    k(f'v_mov_b32 v{one}, 1.0'); k(f'v_mov_b32 v{one+1}, 1.0')
    k(f's_lshr_b32 s27, s{S_WAVE}, 1'); k(f's_lshl_b32 s30, s{S_MT}, 1'); k('s_add_u32 s30, s30, s27')
    k(f's_mul_i32 s30, s30, {56*4096}')
    k(f's_and_b32 s27, s{S_WAVE}, 1'); k('s_lshl_b32 s27, s27, 11'); k('s_add_u32 s30, s30, s27'); k(f's_add_u32 s30, s30, {WS_H1}')
    k(f's_mul_i32 s31, s{S_NT}, 7')
    k(f's_add_u32 s4, s31, s{S_PAR}'); k('s_lshr_b32 s4, s4, 1'); k('s_lshl_b32 s4, s4, 12'); k('s_add_u32 s4, s4, s30')
    k(f's_mul_i32 s5, s{S_PAR}, 7'); k('s_sub_u32 s5, 6, s5'); k('s_add_u32 s5, s5, s31'); k('s_lshr_b32 s5, s5, 1')
    k('s_lshl_b32 s5, s5, 12'); k('s_add_u32 s5, s5, s30'); k(f's_lshl_b32 s27, s{S_PAR}, 9'); k('s_add_u32 s5, s5, s27')
    k(f'v_lshlrev_b32 v{bp}, 3, v{lane}')
    pool=[fW[0][j] for j in range(7)]+[fW[1][j] for j in range(7)]
    outp=[fH[0][0],fH[0][1],fH[1][0],fH[1][1]]
    def gelu_tile(a,csr,b1r,c,tmp,dst):
        X=tmp[0]; E=tmp[1]
        P=lambda r,h: V(r+2*h,2)
        st=[[] for _ in range(9)]
        for h in range(2):
            st[0].append(f'v_pk_fma_f32 {P(X,h)}, {P(csr,h)}, {V(nmr[c],2)}, {P(b1r,h)} op_sel_hi:[1,0,1]')
            st[1].append(f'v_pk_fma_f32 {P(X,h)}, {P(a,h)}, {V(rstd[c],2)}, {P(X,h)} op_sel_hi:[1,0,1]')
            st[2].append(f'v_pk_mul_f32 {P(E,h)}, {P(X,h)}, {P(X,h)}')
            st[3].append(f'v_pk_fma_f32 {P(E,h)}, {P(E,h)}, s[28:29], {V(kc1,2)}')
            st[4].append(f'v_pk_mul_f32 {P(E,h)}, {P(E,h)}, {P(X,h)}')
            st[5]+= [f'v_exp_f32 v{E+2*h}, v{E+2*h}', f'v_exp_f32 v{E+2*h+1}, v{E+2*h+1}']
            st[6].append(f'v_pk_add_f32 {P(E,h)}, {P(E,h)}, {V(one,2)}')
            st[7]+= [f'v_rcp_f32 v{E+2*h}, v{E+2*h}', f'v_rcp_f32 v{E+2*h+1}, v{E+2*h+1}']
            st[8].append(f'v_pk_mul_f32 {P(X,h)}, {P(X,h)}, {P(E,h)}')
        fin=[f'v_cvt_pk_bf16_f32 v{dst+h}, v{X+2*h}, v{X+2*h+1}' for h in range(2)]
        return st,fin
    oi=0
    for c in range(2):
        for q in range(3):
            o_=outp[oi%4]; oi+=1
            sa,fa_=gelu_tile(acc[2*q][c],cs[2*q],b1[2*q],c,(pool[0],pool[1]),o_)
            sb,fb_=gelu_tile(acc[2*q+1][c],cs[2*q+1],b1[2*q+1],c,(pool[2],pool[3]),o_+2)
            for si,(x_,y_) in enumerate(zip(sa,sb)):
                for l in x_+y_: k(l)
                if si in (1,4,6) and nw2[0]<56: w2load()
            for l in fa_+fb_: k(l)
            k(f's_add_u32 s27, s4, {q*4096+c*1024}')
            k(f'buffer_store_dwordx4 {V(o_,4)}, v{vl}, {sr4(WS)}, s27 offen sc1')
    o_=outp[oi%4]
    sa,fa_=gelu_tile(acc[6][0],cs[6],b1[6],0,(pool[0],pool[1]),o_)
    sb,fb_=gelu_tile(acc[6][1],cs[6],b1[6],1,(pool[2],pool[3]),o_+2)
    for x_,y_ in zip(sa,sb):
        for l in x_+y_: k(l)
    for l in fa_+fb_: k(l)
    k(f'buffer_store_dwordx2 {V(o_,2)}, v{bp}, {sr4(WS)}, s5 offen sc1')
    k(f'buffer_store_dwordx2 {V(o_+2,2)}, v{bp}, {sr4(WS)}, s5 offen offset:1024 sc1')
    assert nw2[0]==56, nw2
    ST('c_gelu')
    k.v.release(base_mark)
    t0=k.v.alloc(); t1=k.v.alloc(); t2=k.v.alloc(); t3=k.v.alloc(); sv=k.v.alloc(); vb=k.v.alloc()
    k(f's_lshl_b32 s26, s{S_MT}, 8'); k(f's_add_u32 s26, s26, {WS_SYNC+C2}')
    k(f'v_mov_b32 v{sv}, s26')
    k(f'v_lshrrev_b32 v{t0}, 4, v{lane}')
    k(f'v_lshlrev_b32 v{vb}, 3, v{t0}')
    k('s_waitcnt vmcnt(0)')
    ST('c_ack')
    k('s_barrier')
    waveA(lambda: arrive(sv,lane,t0))
    ST('c_arrive')
    vm=VM(k)
    srd(k,T1,P_B2,0,D*2)
    srd(k,T0,P_OUT,0,L*D*2)
    b2=[k.v.alloc(4,4) for _ in range(4)]
    k(f's_lshl_b32 s24, s{S_DT}, 7')
    for j in range(4):
        vm.issue(f'buffer_load_dwordx2 {V(b2[j]+2,2)}, v{vb}, {sr4(T1)}, s24 offen offset:{32*j}','b2')
    NR=PD+1
    fHd=[[k.v.alloc(4,4) for _ in range(4)] for _ in range(NR)]
    acc=[[k.v.alloc(4,4) for _ in range(4)] for _ in range(4)]
    for a in sum(acc,[]):
        for r in range(4): k(f'v_mov_b32 v{a+r}, 0')
    k(f's_mul_i32 s25, s{S_LT}, {56*4096}'); k(f's_mul_i32 s26, s{S_WAVE}, {14*4096}'); k('s_add_u32 s25, s25, s26'); k(f's_add_u32 s25, s25, {WS_H1}')
    vli=[k.v.alloc() for _ in range(4)]; vli8=[k.v.alloc() for _ in range(4)]
    wi=[k.v.alloc() for _ in range(3)]; rdv=k.v.alloc(); rr_=k.v.alloc(); so=k.v.alloc()
    k(f'v_lshlrev_b32 v{t1}, 3, v{lane}')
    for i in range(4):
        k(f's_add_u32 s26, s{S_WAVE}, {i}'); k('s_and_b32 s26, s26, 3')
        k(f's_lshl_b32 s27, s26, 10')
        k(f'v_add_u32 v{vli[i]}, s27, v{vl}')
        k(f'v_add_u32 v{vli8[i]}, s27, v{t1}')
        if i>0:
            k(f's_mul_i32 s27, s26, 12288'); k(f's_add_u32 s27, s27, {(i-1)*4096}')
            k(f'v_add_u32 v{wi[i-1]}, s27, v{vl}')
    k(f's_mul_i32 s27, s{S_WAVE}, 12288')
    k(f'v_add_u32 v{rdv}, s27, v{vl}')
    k(f's_lshl_b32 s29, s{S_WAVE}, 11'); k(f's_add_u32 s29, s29, {rs_l}')
    k(f'v_add_u32 v{rr_}, s29, v{t1}')
    k(f'v_and_b32 v{t0}, 15, v{lane}')
    k(f'v_lshlrev_b32 v{so}, 10, v{t0}')
    k(f'v_add_u32 v{so}, v{so}, v{vb}')
    k(f's_lshl_b32 s4, s{S_LT}, 16'); k(f's_lshl_b32 s28, s{S_WAVE}, 14'); k('s_add_u32 s4, s4, s28'); k('s_add_u32 s4, s4, s24')
    res=[k.v.alloc(2,2) for _ in range(4)]
    for j in range(4):
        k(f'ds_read_b64_tr_b16 {V(res[j],2)}, v{rr_} offset:{j*512}')
    vm.wait('b2')
    for j in range(4):
        k(f'v_lshlrev_b32 v{b2[j]}, 16, v{b2[j]+2}')
        k(f'v_and_b32 v{b2[j]+1}, 0xffff0000, v{b2[j]+2}')
        k(f'v_lshlrev_b32 v{b2[j]+2}, 16, v{b2[j]+3}')
        k(f'v_and_b32 v{b2[j]+3}, 0xffff0000, v{b2[j]+3}')
    resf=[k.v.alloc(4,4) for _ in range(4)]
    k('s_waitcnt lgkmcnt(0)')
    for j in range(4):
        k(f'v_lshlrev_b32 v{resf[j]}, 16, v{res[j]}')
        k(f'v_and_b32 v{resf[j]+1}, 0xffff0000, v{res[j]}')
        k(f'v_lshlrev_b32 v{resf[j]+2}, 16, v{res[j]+1}')
        k(f'v_and_b32 v{resf[j]+3}, 0xffff0000, v{res[j]+1}')
    if not mimic_out:
        for j in range(4):
            for h in range(2): k(f'v_pk_add_f32 {V(resf[j]+2*h,2)}, {V(resf[j]+2*h,2)}, {V(b2[j]+2*h,2)}')
    wave0(lambda: poll(sv,1,16,lane,t0))
    k('s_waitcnt vmcnt(0)')
    k('s_barrier')
    ST('d_bar')
    vm=VM(k)
    def issue_list(s):
        out=[]
        for i in range(4):
            first=(i==0)
            if s in (3,10):
                def f_(i=i,first=first):
                    if first: k(f's_add_u32 s26, s25, {s*4096}')
                    vm.issue(f'buffer_load_dwordx2 {V(fHd[s%NR][i],2)}, v{vli8[i]}, {sr4(WS)}, s26 offen sc1',f'g{s}')
                    vm.issue(f'buffer_load_dwordx2 {V(fHd[s%NR][i]+2,2)}, v{vli8[i]}, {sr4(WS)}, s26 offen offset:512 sc1',f'g{s}')
            else:
                def f_(i=i,first=first):
                    if first: k(f's_add_u32 s26, s25, {s*4096}')
                    vm.issue(f'buffer_load_dwordx4 {V(fHd[s%NR][i],4)}, v{vli[i]}, {sr4(WS)}, s26 offen sc1',f'g{s}')
            out.append(f_)
        return out
    for s in range(PD):
        for f_ in issue_list(s): f_()
    for s in range(14):
        vm.wait(f'g{s}')
        ST(f'd_s{s}')
        side=issue_list(s+PD) if s+PD<=13 else []
        n=0
        for j in range(4):
            for i in range(4):
                k(f'v_mfma_f32_16x16x32_bf16 {V(acc[j][i],4)}, {Ac(16*s+4*j,4)}, {V(fHd[s%NR][i],4)}, {V(acc[j][i],4)}')
                if (4*j+i)%4==1 and n<len(side): side[n](); n+=1
    ST('d_main')
    for i in range(1,4):
        for j in range(4):
            k(f'ds_write_b128 v{wi[i-1]}, {V(acc[j][i],4)} offset:{j*1024}')
    k('s_waitcnt lgkmcnt(0)')
    k('s_barrier')
    ST('d_red')
    tmp=[[fHd[i][j] for j in range(4)] for i in range(3)]
    for j in range(4):
        for i in range(3):
            k(f'ds_read_b128 {V(tmp[i][j],4)}, v{rdv} offset:{i*4096+j*1024}')
    T=[fHd[4][0]+i for i in range(4)]; O=[fHd[4][1],fHd[4][1]+2,fHd[4][2],fHd[4][2]+2]
    k('s_mov_b32 s28, 0xffff0000')
    for j in range(4):
        a=acc[j][0]
        k(f's_waitcnt lgkmcnt({3*(3-j)})')
        for i in range(3):
            for h in range(2): k(f'v_pk_add_f32 {V(a+2*h,2)}, {V(a+2*h,2)}, {V(tmp[i][j]+2*h,2)}')
        if mimic_out:
            for stage in (b2[j],resf[j]):
                for h in range(2):
                    y0=a+2*h; y1=y0+1
                    k(f'v_cvt_pk_bf16_f32 v{T[h]}, v{y0}, v{y1}')
                    k(f'v_lshlrev_b32 v{y0}, 16, v{T[h]}')
                    k(f'v_and_b32 v{y1}, s28, v{T[h]}')
                for h in range(2):
                    k(f'v_pk_add_f32 {V(a+2*h,2)}, {V(a+2*h,2)}, {V(stage+2*h,2)}')
        else:
            for h in range(2):
                k(f'v_pk_add_f32 {V(a+2*h,2)}, {V(a+2*h,2)}, {V(resf[j]+2*h,2)}')
        for h in range(2):
            k(f'v_cvt_pk_bf16_f32 v{O[j]+h}, v{a+2*h}, v{a+2*h+1}')
        k(f'buffer_store_dwordx2 {V(O[j],2)}, v{so}, {sr4(T0)}, s4 offen offset:{32*j} {outsc}')
    ST('d_epi')
    k.end(0)
    k.label(lx); k('s_endpgm')
    k.label(f'{name}_codeend')
    k('.p2align 4')
    k.lines.append(f'.type {tabl},@object')
    k.label(tabl)
    t=gather_table()+[3072]*16
    for i in range(0,len(t),16):
        k.lines.append('.short '+','.join(str(v) for v in t[i:i+16]))
    return k, dict(name=name,grid=256,block=256,lds=LDS_TOTAL,vgpr=256,sgpr=73,agpr=224)
```

```python
import sys
from kb import *
import kb, build, km
TARGET='sequential_preLN__ssm_conv_s4d__dense_activation_gelu__prompt_kernel'
def make(stamp=False, aslist=True, **kw):
    kb.STAMP_ON[0]=stamp
    P=km.build_km(name=TARGET, **kw)
    ninst=sum(1 for l in P[0].finish() if l.startswith('    ') and not l.strip().startswith(';'))
    print(P[1],'instrs',ninst,'max vgpr used',P[0].v.maxused)
    s=build.build([P])
    if kw.get('stamps'): s=s.replace('.amdgcn_target','; stamps: '+','.join(kw['stamps'])+'\n.amdgcn_target',1)
    if not aslist:
        s=s.replace(f'; @launch kernel={TARGET} grid','; @launch grid')
    return s
if __name__=='__main__':
    stamp=len(sys.argv)>2 and sys.argv[2]=='stamp'
    kw={}
    for a in sys.argv[3:]:
        n,v=a.split('=')
        kw[n]=v.split(',') if n=='stamps' else eval(v)
    s=make(stamp,**kw)
    path=sys.argv[1]; open(path,'w').write(s); print('wrote',path,len(s))
```

```python
import sys
sys.path.insert(0,'lib')
import hazard
class Regs:
    def __init__(s, kind, lo, hi):
        s.kind=kind; s.lo=lo; s.hi=hi; s.used=[False]*hi; s.maxused=lo-1; s.stack=[]
    def alloc(s, n=1, align=1, name=None):
        a=(s.lo+align-1)//align*align
        while a+n<=s.hi:
            if not any(s.used[a:a+n]):
                for i in range(a,a+n): s.used[i]=True
                s.stack.append((a,n)); s.maxused=max(s.maxused,a+n-1)
                return a
            a+=align
        raise RuntimeError(f'out of {s.kind} regs (want {n}, {s.used.count(False)-s.lo} free)')
    def free(s,*regs):
        for r in regs:
            if isinstance(r,(list,tuple)): s.free(*r); continue
            for e in s.stack:
                if e[0]==r:
                    for i in range(e[0],e[0]+e[1]): s.used[i]=False
                    s.stack.remove(e); break
            else: raise RuntimeError(f'free of unknown reg {r}')
    def mark(s): return list(s.stack)
    def release(s,m):
        keep=set(m)
        for e in list(s.stack):
            if e not in keep:
                for i in range(e[0],e[0]+e[1]): s.used[i]=False
                s.stack.remove(e)
    def nfree(s): return s.used[s.lo:].count(False)
STAMP_ON=[False]
class KB:
    def __init__(s,name,vlo=1,slo=3):
        s.name=name; s.lines=[]; s.v=Regs('v',vlo,256); s.s=Regs('s',slo,100); s.a=Regs('a',0,256); s._l=0
    def __call__(s,t=''):
        for l in str(t).split('\n'):
            l=l.rstrip()
            if l.strip()=='' : continue
            st=l.strip()
            if st.endswith(':') or st.startswith('.'): s.lines.append(st)
            else:
                s.lines.append('    '+st)
                p=getattr(s,'_pace',None)
                if p and not p['busy']:
                    p['n']+=1
                    if p['n']>=p['every'] and p['q'] and p['left']>0:
                        p['n']=0; p['left']-=1; p['busy']=True; p['q'].pop(0)(); p['busy']=False
    def pace(s,q,every,count=10**9):
        s._pace=dict(q=q,every=every,n=0,left=count,busy=False)
    def pace_off(s):
        p=getattr(s,'_pace',None); s._pace=None; return p
    def pace_resume(s,p): s._pace=p
    def c(s,t): s.lines.append('    ; '+t)
    def lab(s,b):
        s._l+=1; return f'{s.name}_{b}{s._l}'
    def label(s,l): s.lines.append(l+':')
    NST=11
    def start_stamp(s):
        if STAMP_ON[0]:
            s('s_mov_b32 s73, s2')
            s('s_memrealtime s[74:75]')
            s('s_memtime s[76:77]')
            for i in range(s.NST): s(f's_mov_b64 s[{78+2*i}:{79+2*i}], 0')
    def stamp(s,i):
        if STAMP_ON[0]:
            assert i<=s.NST
            s(f's_memtime s[{76+2*i}:{77+2*i}]')
    def end(s, idx=None):
        if STAMP_ON[0] and idx is not None:
            s('s_mov_b64 exec, -1')
            s('s_waitcnt vmcnt(0) lgkmcnt(0)')
            s('s_memrealtime s[100:101]')
            s('s_memtime s[6:7]')
            s('s_load_dwordx2 s[4:5], s[0:1], 112')
            s('s_waitcnt lgkmcnt(0)')
            s('s_sub_u32 s6, s6, s76')
            s(f's_add_u32 s4, s4, {hex((24<<20)+idx*(1<<20))}')
            s('s_addc_u32 s5, s5, 0')
            s('v_lshrrev_b32 v1, 6, v0')
            s('v_and_b32 v2, 63, v0')
            s('v_lshlrev_b32 v1, 7, v1')
            s('s_lshl_b32 s7, s73, 10')
            s('v_add_u32 v1, s7, v1')
            for i in range(s.NST): s(f's_sub_u32 s{78+2*i}, s{78+2*i}, s76')
            vals=['s74','s75','s100','s101']+[f's{78+2*i}' for i in range(s.NST)]+['0']*(20-s.NST)+['s6']
            s('v_cmp_eq_u32 vcc, 0, v2')
            s('s_and_saveexec_b64 s[76:77], vcc')
            for n in range(0,len(vals),4):
                grp=vals[n:n+4]
                for q,x in enumerate(grp): s(f'v_mov_b32 v{4+q}, {x}')
                s(f'global_store_dwordx4 v1, v[4:7], s[4:5] offset:{4*n}')
        s('s_endpgm')
    def finish(s,verbose=False):
        return hazard.fix(s.lines,verbose)
def V(a,n=1): return f'v{a}' if n==1 else f'v[{a}:{a+n-1}]'
def S(a,n=1): return f's{a}' if n==1 else f's[{a}:{a+n-1}]'
def Ac(a,n=1): return f'a{a}' if n==1 else f'a[{a}:{a+n-1}]'
def desc(name,vgpr,sgpr,agpr=0):
    if STAMP_ON[0]: sgpr=102; vgpr=max(vgpr,16)
    acc=(vgpr+3)//4*4
    if acc<4: acc=4
    nfv=acc+agpr if agpr else vgpr
    return f'''.p2align 6
.amdhsa_kernel {name}
  .amdhsa_next_free_vgpr {nfv}
  .amdhsa_next_free_sgpr {sgpr}
  .amdhsa_accum_offset {acc}
  .amdhsa_group_segment_fixed_size 0
  .amdhsa_kernarg_size 120
  .amdhsa_user_sgpr_count 2
  .amdhsa_user_sgpr_kernarg_segment_ptr 1
  .amdhsa_system_sgpr_workgroup_id_x 1
  .amdhsa_float_denorm_mode_32 3
  .amdhsa_float_denorm_mode_16_64 3
  .amdhsa_ieee_mode 0
  .amdhsa_dx10_clamp 0
.end_amdhsa_kernel
'''
```

```python
import sys
from kb import *
import kb, build, importlib
TARGET='sequential_preLN__ssm_conv_s4d__dense_activation_gelu__prompt_kernel'
def make(stamp=False, aslist=True, mod='km', **kw):
    km=importlib.import_module(mod)
    kb.STAMP_ON[0]=stamp
    kb.AMP[0]=kw.pop('amp',None)
    P=km.build_km(name=TARGET, **kw)
    ninst=sum(1 for l in P[0].finish() if l.startswith('    ') and not l.strip().startswith(';'))
    print(P[1],'instrs',ninst,'max vgpr used',P[0].v.maxused)
    s=build.build([P])
    if kw.get('stamps'): s=s.replace('.amdgcn_target','; stamps: '+','.join(kw['stamps'])+'\n.amdgcn_target',1)
    if not aslist:
        s=s.replace(f'; @launch kernel={TARGET} grid','; @launch grid')
    return s
if __name__=='__main__':
    stamp=len(sys.argv)>2 and sys.argv[2]=='stamp'
    kw={}
    for a in sys.argv[3:]:
        n,v=a.split('=')
        kw[n]=v.split(',') if n=='stamps' else (v if n=='mod' else eval(v))
    s=make(stamp,**kw)
    path=sys.argv[1]; open(path,'w').write(s); print('wrote',path,len(s))
```

```python
import sys
sys.path.insert(0,'lib')
import hazard
class Regs:
    def __init__(s, kind, lo, hi):
        s.kind=kind; s.lo=lo; s.hi=hi; s.used=[False]*hi; s.maxused=lo-1; s.stack=[]
    def alloc(s, n=1, align=1, name=None):
        a=(s.lo+align-1)//align*align
        while a+n<=s.hi:
            if not any(s.used[a:a+n]):
                for i in range(a,a+n): s.used[i]=True
                s.stack.append((a,n)); s.maxused=max(s.maxused,a+n-1)
                return a
            a+=align
        raise RuntimeError(f'out of {s.kind} regs (want {n}, {s.used.count(False)-s.lo} free)')
    def free(s,*regs):
        for r in regs:
            if isinstance(r,(list,tuple)): s.free(*r); continue
            for e in s.stack:
                if e[0]==r:
                    for i in range(e[0],e[0]+e[1]): s.used[i]=False
                    s.stack.remove(e); break
            else: raise RuntimeError(f'free of unknown reg {r}')
    def mark(s): return list(s.stack)
    def release(s,m):
        keep=set(m)
        for e in list(s.stack):
            if e not in keep:
                for i in range(e[0],e[0]+e[1]): s.used[i]=False
                s.stack.remove(e)
    def nfree(s): return s.used[s.lo:].count(False)
STAMP_ON=[False]
AMP=[None]
class KB:
    def __init__(s,name,vlo=1,slo=3):
        s.name=name; s.lines=[]; s.v=Regs('v',vlo,256); s.s=Regs('s',slo,100); s.a=Regs('a',0,256); s._l=0
    def __call__(s,t=''):
        for l in str(t).split('\n'):
            l=l.rstrip()
            if l.strip()=='' : continue
            st=l.strip()
            if st.endswith(':') or st.startswith('.'): s.lines.append(st)
            else:
                s.lines.append('    '+st)
                p=getattr(s,'_pace',None)
                if p and not p['busy']:
                    p['n']+=1
                    if p['n']>=p['every'] and p['q'] and p['left']>0:
                        p['n']=0; p['left']-=1; p['busy']=True; p['q'].pop(0)(); p['busy']=False
    def pace(s,q,every,count=10**9):
        s._pace=dict(q=q,every=every,n=0,left=count,busy=False)
    def pace_off(s):
        p=getattr(s,'_pace',None); s._pace=None; return p
    def pace_resume(s,p): s._pace=p
    def c(s,t): s.lines.append('    ; '+t)
    def lab(s,b):
        s._l+=1; return f'{s.name}_{b}{s._l}'
    def label(s,l): s.lines.append(l+':')
    NST=11
    def start_stamp(s):
        if STAMP_ON[0]:
            s('s_mov_b32 s73, s2')
            s('s_memrealtime s[74:75]')
            s('s_memtime s[76:77]')
            for i in range(s.NST): s(f's_mov_b64 s[{78+2*i}:{79+2*i}], 0')
    def stamp(s,i):
        if STAMP_ON[0]:
            assert i<=s.NST
            s(f's_memtime s[{76+2*i}:{77+2*i}]')
    def end(s, idx=None):
        if STAMP_ON[0] and AMP[0] is not None:
            which,K,wg=AMP[0]
            l0=s.lab('amp0'); l1=s.lab('amp1')
            s('s_waitcnt vmcnt(0) lgkmcnt(0)')
            s(f's_cmp_eq_u32 s73, {wg}'); s(f's_cbranch_scc0 {l0}')
            s('v_readfirstlane_b32 s6, v0'); s('s_cmp_lt_u32 s6, 64');
            s('s_cmp_eq_u32 s20, 0'); s(f's_cbranch_scc0 {l0}')
            if which<0: s(f's_mov_b32 s4, {-which}')
            elif which==0:
                s('s_memtime s[6:7]'); s('s_waitcnt lgkmcnt(0)'); s('s_sub_u32 s4, s6, s76'); s(f's_mul_i32 s4, s4, {K}')
            else:
                s(f's_sub_u32 s4, s{76+2*which}, s76'); s(f's_mul_i32 s4, s4, {K}')
            s('s_min_u32 s4, s4, 0x100000')
            s('s_memtime s[6:7]'); s('s_waitcnt lgkmcnt(0)'); s('s_mov_b32 s5, s6')
            s.label(l1)
            s('s_memtime s[6:7]'); s('s_waitcnt lgkmcnt(0)'); s('s_sub_u32 s6, s6, s5'); s('s_cmp_lt_u32 s6, s4'); s(f's_cbranch_scc1 {l1}')
            s.label(l0)
            s('s_endpgm'); return
        if STAMP_ON[0] and idx is not None:
            s('s_mov_b64 exec, -1')
            s('s_waitcnt vmcnt(0) lgkmcnt(0)')
            s('s_memrealtime s[100:101]')
            s('s_memtime s[6:7]')
            s('s_load_dwordx2 s[4:5], s[0:1], 112')
            s('s_waitcnt lgkmcnt(0)')
            s('s_sub_u32 s6, s6, s76')
            s(f's_add_u32 s4, s4, {hex((24<<20)+idx*(1<<20))}')
            s('s_addc_u32 s5, s5, 0')
            s('v_lshrrev_b32 v1, 6, v0')
            s('v_and_b32 v2, 63, v0')
            s('v_lshlrev_b32 v1, 7, v1')
            s('s_lshl_b32 s7, s73, 10')
            s('v_add_u32 v1, s7, v1')
            for i in range(s.NST): s(f's_sub_u32 s{78+2*i}, s{78+2*i}, s76')
            vals=['s74','s75','s100','s101']+[f's{78+2*i}' for i in range(s.NST)]+['0']*(20-s.NST)+['s6']
            s('v_cmp_eq_u32 vcc, 0, v2')
            s('s_and_saveexec_b64 s[76:77], vcc')
            for n in range(0,len(vals),4):
                grp=vals[n:n+4]
                for q,x in enumerate(grp): s(f'v_mov_b32 v{4+q}, {x}')
                s(f'global_store_dwordx4 v1, v[4:7], s[4:5] offset:{4*n}')
        s('s_endpgm')
    def finish(s,verbose=False):
        return hazard.fix(s.lines,verbose)
def V(a,n=1): return f'v{a}' if n==1 else f'v[{a}:{a+n-1}]'
def S(a,n=1): return f's{a}' if n==1 else f's[{a}:{a+n-1}]'
def Ac(a,n=1): return f'a{a}' if n==1 else f'a[{a}:{a+n-1}]'
def desc(name,vgpr,sgpr,agpr=0):
    if STAMP_ON[0]: sgpr=102; vgpr=max(vgpr,16)
    acc=(vgpr+3)//4*4
    if acc<4: acc=4
    nfv=acc+agpr if agpr else vgpr
    return f'''.p2align 6
.amdhsa_kernel {name}
  .amdhsa_next_free_vgpr {nfv}
  .amdhsa_next_free_sgpr {sgpr}
  .amdhsa_accum_offset {acc}
  .amdhsa_group_segment_fixed_size 0
  .amdhsa_kernarg_size 120
  .amdhsa_user_sgpr_count 2
  .amdhsa_user_sgpr_kernarg_segment_ptr 1
  .amdhsa_system_sgpr_workgroup_id_x 1
  .amdhsa_float_denorm_mode_32 3
  .amdhsa_float_denorm_mode_16_64 3
  .amdhsa_ieee_mode 0
  .amdhsa_dx10_clamp 0
.end_amdhsa_kernel
'''
```

```python
import sys
sys.path.insert(0,'lib')
import hazard
class Regs:
    def __init__(s, kind, lo, hi):
        s.kind=kind; s.lo=lo; s.hi=hi; s.used=[False]*hi; s.maxused=lo-1; s.stack=[]
    def alloc(s, n=1, align=1, name=None):
        a=(s.lo+align-1)//align*align
        while a+n<=s.hi:
            if not any(s.used[a:a+n]):
                for i in range(a,a+n): s.used[i]=True
                s.stack.append((a,n)); s.maxused=max(s.maxused,a+n-1)
                return a
            a+=align
        raise RuntimeError(f'out of {s.kind} regs (want {n}, {s.used.count(False)-s.lo} free)')
    def free(s,*regs):
        for r in regs:
            if isinstance(r,(list,tuple)): s.free(*r); continue
            for e in s.stack:
                if e[0]==r:
                    for i in range(e[0],e[0]+e[1]): s.used[i]=False
                    s.stack.remove(e); break
            else: raise RuntimeError(f'free of unknown reg {r}')
    def mark(s): return list(s.stack)
    def release(s,m):
        keep=set(m)
        for e in list(s.stack):
            if e not in keep:
                for i in range(e[0],e[0]+e[1]): s.used[i]=False
                s.stack.remove(e)
    def nfree(s): return s.used[s.lo:].count(False)
STAMP_ON=[False]
AMP=[None]
class KB:
    def __init__(s,name,vlo=1,slo=3):
        s.name=name; s.lines=[]; s.v=Regs('v',vlo,256); s.s=Regs('s',slo,100); s.a=Regs('a',0,256); s._l=0
    def __call__(s,t=''):
        for l in str(t).split('\n'):
            l=l.rstrip()
            if l.strip()=='' : continue
            st=l.strip()
            if st.endswith(':') or st.startswith('.'): s.lines.append(st)
            else:
                s.lines.append('    '+st)
                p=getattr(s,'_pace',None)
                if p and not p['busy']:
                    p['n']+=1
                    if p['n']>=p['every'] and p['q'] and p['left']>0:
                        p['n']=0; p['left']-=1; p['busy']=True; p['q'].pop(0)(); p['busy']=False
    def pace(s,q,every,count=10**9):
        s._pace=dict(q=q,every=every,n=0,left=count,busy=False)
    def pace_off(s):
        p=getattr(s,'_pace',None); s._pace=None; return p
    def pace_resume(s,p): s._pace=p
    def c(s,t): s.lines.append('    ; '+t)
    def lab(s,b):
        s._l+=1; return f'{s.name}_{b}{s._l}'
    def label(s,l): s.lines.append(l+':')
    NST=11
    def start_stamp(s):
        if STAMP_ON[0]:
            s('s_mov_b32 s73, s2')
            s('s_memrealtime s[74:75]')
            s('s_memtime s[76:77]')
            for i in range(s.NST): s(f's_mov_b64 s[{78+2*i}:{79+2*i}], 0')
    def stamp(s,i):
        if STAMP_ON[0]:
            assert i<=s.NST
            if AMP[0] is not None and AMP[0][2]=='max': s(f's_memrealtime s[{76+2*i}:{77+2*i}]')
            else: s(f's_memtime s[{76+2*i}:{77+2*i}]')
    def end(s, idx=None):
        if STAMP_ON[0] and AMP[0] is not None and AMP[0][2]=='max':
            which,K,_,mode=AMP[0]
            l0=s.lab('amp0'); l1=s.lab('amp1'); l2=s.lab('amp2')
            s('s_waitcnt vmcnt(0) lgkmcnt(0)')
            s('s_cmp_eq_u32 s20, 0'); s(f's_cbranch_scc0 {l0}')
            s('s_mov_b64 exec, 1')
            s(f's_sub_u32 s4, s{76+2*which}, s74')
            if mode=='abs': pass
            s(f'v_mov_b32 v4, s{76+2*which}');
            if mode=='min': s('v_not_b32 v4, v4')
            s('v_mov_b32 v5, 0'); s('v_mov_b32 v6, 1')
            s('global_atomic_umax v5, v4, s[62:63]')
            s('s_waitcnt vmcnt(0)')
            s('global_atomic_add v5, v6, s[62:63] offset:128')
            s('s_waitcnt vmcnt(0)')
            s('s_cmp_eq_u32 s73, 0'); s(f's_cbranch_scc0 {l0}')
            s('s_mov_b32 s5, 0')
            s.label(l1)
            s('global_load_dword v7, v5, s[62:63] offset:128 sc1'); s('s_waitcnt vmcnt(0)'); s('v_readfirstlane_b32 s6, v7')
            s('s_add_u32 s5, s5, 1'); s('s_cmp_gt_u32 s5, 20000'); s(f's_cbranch_scc1 {l0}')
            s('s_cmp_lt_u32 s6, 256'); s(f's_cbranch_scc1 {l1}')
            s('global_load_dword v7, v5, s[62:63] sc1'); s('s_waitcnt vmcnt(0)')
            if mode=='min': s('v_not_b32 v7, v7')
            s('v_readfirstlane_b32 s6, v7'); s('s_nop 4')
            s('s_sub_u32 s4, s6, s74'); s(f's_mul_i32 s4, s4, {K}'); s('s_min_u32 s4, s4, 50000')
            s('s_memrealtime s[6:7]'); s('s_waitcnt lgkmcnt(0)'); s('s_mov_b32 s5, s6')
            s.label(l2)
            s('s_memrealtime s[6:7]'); s('s_waitcnt lgkmcnt(0)'); s('s_sub_u32 s6, s6, s5'); s('s_cmp_lt_u32 s6, s4'); s(f's_cbranch_scc1 {l2}')
            s.label(l0)
            s('s_endpgm'); return
        if STAMP_ON[0] and AMP[0] is not None:
            which,K,wg=AMP[0][:3]
            l0=s.lab('amp0'); l1=s.lab('amp1')
            s('s_waitcnt vmcnt(0) lgkmcnt(0)')
            s(f's_cmp_eq_u32 s73, {wg}'); s(f's_cbranch_scc0 {l0}')
            s('v_readfirstlane_b32 s6, v0'); s('s_cmp_lt_u32 s6, 64');
            s('s_cmp_eq_u32 s20, 0'); s(f's_cbranch_scc0 {l0}')
            if which<0: s(f's_mov_b32 s4, {-which}')
            elif which==0:
                s('s_memtime s[6:7]'); s('s_waitcnt lgkmcnt(0)'); s('s_sub_u32 s4, s6, s76'); s(f's_mul_i32 s4, s4, {K}')
            else:
                s(f's_sub_u32 s4, s{76+2*which}, s76'); s(f's_mul_i32 s4, s4, {K}')
            s('s_min_u32 s4, s4, 0x100000')
            s('s_memtime s[6:7]'); s('s_waitcnt lgkmcnt(0)'); s('s_mov_b32 s5, s6')
            s.label(l1)
            s('s_memtime s[6:7]'); s('s_waitcnt lgkmcnt(0)'); s('s_sub_u32 s6, s6, s5'); s('s_cmp_lt_u32 s6, s4'); s(f's_cbranch_scc1 {l1}')
            s.label(l0)
            s('s_endpgm'); return
        if STAMP_ON[0] and idx is not None:
            s('s_mov_b64 exec, -1')
            s('s_waitcnt vmcnt(0) lgkmcnt(0)')
            s('s_memrealtime s[100:101]')
            s('s_memtime s[6:7]')
            s('s_load_dwordx2 s[4:5], s[0:1], 112')
            s('s_waitcnt lgkmcnt(0)')
            s('s_sub_u32 s6, s6, s76')
            s(f's_add_u32 s4, s4, {hex((24<<20)+idx*(1<<20))}')
            s('s_addc_u32 s5, s5, 0')
            s('v_lshrrev_b32 v1, 6, v0')
            s('v_and_b32 v2, 63, v0')
            s('v_lshlrev_b32 v1, 7, v1')
            s('s_lshl_b32 s7, s73, 10')
            s('v_add_u32 v1, s7, v1')
            for i in range(s.NST): s(f's_sub_u32 s{78+2*i}, s{78+2*i}, s76')
            vals=['s74','s75','s100','s101']+[f's{78+2*i}' for i in range(s.NST)]+['0']*(20-s.NST)+['s6']
            s('v_cmp_eq_u32 vcc, 0, v2')
            s('s_and_saveexec_b64 s[76:77], vcc')
            for n in range(0,len(vals),4):
                grp=vals[n:n+4]
                for q,x in enumerate(grp): s(f'v_mov_b32 v{4+q}, {x}')
                s(f'global_store_dwordx4 v1, v[4:7], s[4:5] offset:{4*n}')
        s('s_endpgm')
    def finish(s,verbose=False):
        return hazard.fix(s.lines,verbose)
def V(a,n=1): return f'v{a}' if n==1 else f'v[{a}:{a+n-1}]'
def S(a,n=1): return f's{a}' if n==1 else f's[{a}:{a+n-1}]'
def Ac(a,n=1): return f'a{a}' if n==1 else f'a[{a}:{a+n-1}]'
def desc(name,vgpr,sgpr,agpr=0):
    if STAMP_ON[0]: sgpr=102; vgpr=max(vgpr,16)
    acc=(vgpr+3)//4*4
    if acc<4: acc=4
    nfv=acc+agpr if agpr else vgpr
    return f'''.p2align 6
.amdhsa_kernel {name}
  .amdhsa_next_free_vgpr {nfv}
  .amdhsa_next_free_sgpr {sgpr}
  .amdhsa_accum_offset {acc}
  .amdhsa_group_segment_fixed_size 0
  .amdhsa_kernarg_size 120
  .amdhsa_user_sgpr_count 2
  .amdhsa_user_sgpr_kernarg_segment_ptr 1
  .amdhsa_system_sgpr_workgroup_id_x 1
  .amdhsa_float_denorm_mode_32 3
  .amdhsa_float_denorm_mode_16_64 3
  .amdhsa_ieee_mode 0
  .amdhsa_dx10_clamp 0
.end_amdhsa_kernel
'''
```
